```python
import torch

def _softmax(x, axis=-1):
    return torch.softmax(x, dim=axis)
def _gelu(x):
    return torch.nn.functional.gelu(x, approximate="tanh")
def _silu(x):
    return torch.nn.functional.silu(x)
def _sigmoid(x):
    return torch.sigmoid(x)
def _layernorm(x, axis=-1, eps=1e-5):
    m = x.mean(dim=axis, keepdim=True)
    v = x.var(dim=axis, keepdim=True, unbiased=False)
    return (x - m) / torch.sqrt(v + eps)
def _scatter_add(tgt, idx, src, axis=0):
    return tgt.clone().index_add_(axis, idx, src)
def _segment_sum(src, seg, n):
    out = torch.zeros((n,) + src.shape[1:], dtype=src.dtype)
    return out.index_add_(0, seg, src)
def _pad(x, pw):
    flat = tuple(v for pair in reversed(pw) for v in pair)
    return torch.nn.functional.pad(x, flat)

kernel_name = 'concat_heads__linear_kernel_hedgehog__ssm_conv_s4d__prompt'

def setup_inputs():

    _w = (lambda a: (lambda t: t.to(torch.bfloat16) if t.is_floating_point() else t)(torch.as_tensor(a)))
    def _A_setup():
        B, S, D, H = 1, 2048, 640, 32
        Dh = D // H
        return {
            "x": _w((lambda *s: torch.randn(*s, dtype=torch.bfloat16) * 0.4)(B, S, D)),
            "wqkv": _w((lambda *s: torch.randn(*s, dtype=torch.bfloat16) * 0.4)(D, 3 * D)),
            "w_phi": _w((lambda *s: torch.randn(*s, dtype=torch.bfloat16) * 0.4)(H, Dh, Dh) * (Dh ** -0.5)),
            "wo": _w((lambda *s: torch.randn(*s, dtype=torch.bfloat16) * 0.05)(D, D)),
        }
    _A_in = _A_setup()

    def _B_setup():
        Bsz, L, D, N = 1, 2048, 640, 192
        return {
            "u": _w((lambda *s: torch.randn(*s, dtype=torch.bfloat16) * 0.05)(Bsz, L, D)),
            "log_A_real": _w((lambda *s: torch.randn(*s, dtype=torch.bfloat16) * 3.2)(D, N) * 0.5),
            "A_imag": _w((lambda *s: torch.randn(*s, dtype=torch.bfloat16) * 0.2)(D, N) * 3.14),
            "C_real": _w((lambda *s: torch.randn(*s, dtype=torch.bfloat16) * 3.2)(D, N) / N ** 0.5),
            "C_imag": _w((lambda *s: torch.randn(*s, dtype=torch.bfloat16) * 3.2)(D, N) / N ** 0.5),
            "log_dt": _w((lambda *s: torch.randn(*s, dtype=torch.bfloat16) * 0.2)(D) * 0.5 - 4.0),
            "D_skip": _w((lambda *s: torch.randn(*s, dtype=torch.bfloat16) * 0.4)(D)),
        }
    _B_in = _B_setup()

    return {
        "A_x": _A_in["x"],
        "A_wqkv": _A_in["wqkv"],
        "A_w_phi": _A_in["w_phi"],
        "A_wo": _A_in["wo"],
        "B_u": _B_in["u"],
        "B_log_A_real": _B_in["log_A_real"],
        "B_A_imag": _B_in["A_imag"],
        "B_C_real": _B_in["C_real"],
        "B_C_imag": _B_in["C_imag"],
        "B_log_dt": _B_in["log_dt"],
        "B_D_skip": _B_in["D_skip"],
    }

def reference(A_x, A_wqkv, A_w_phi, A_wo, B_u, B_log_A_real, B_A_imag, B_C_real, B_C_imag, B_log_dt, B_D_skip):
    def _A_ref(x, wqkv, w_phi, wo):
        B, S, D = x.shape
        H = 32; Dh = D // H
        qkv = (lambda x, *d: x.permute(*d))((x @ wqkv).reshape(B, S, 3, H, Dh), 2, 0, 3, 1, 4)
        q, k, v = qkv[0], qkv[1], qkv[2]
        pq = torch.einsum("bhsd,hdf->bhsf", q, w_phi)
        pk = torch.einsum("bhsd,hdf->bhsf", k, w_phi)
        phi_q = torch.concatenate([_softmax(pq, axis=-1), _softmax(-pq, axis=-1)], axis=-1)
        phi_k = torch.concatenate([_softmax(pk, axis=-1), _softmax(-pk, axis=-1)], axis=-1)
        kv = torch.einsum("bhsf,bhsd->bhfd", phi_k, v)
        z  = torch.einsum("bhsf->bhf", phi_k)
        num = torch.einsum("bhqf,bhfd->bhqd", phi_q, kv)
        den = torch.einsum("bhqf,bhf->bhq", phi_q, z)[..., None] + 1e-6
        o = num / den
        return (lambda x, *d: x.permute(*d))(o, 0, 2, 1, 3).reshape(B, S, D) @ wo

    def _B_ref(u, log_A_real, A_imag, C_real, C_imag, log_dt, D_skip):
        L = u.shape[1]
        dt = torch.exp(log_dt)
        A = -torch.exp(log_A_real) + 1j * A_imag
        C = (C_real + 1j * C_imag) * dt[:, None]
        pos = (lambda x, dt: x.to(dt))(torch.arange(L), log_dt.dtype)
        P = torch.exp((A * dt[:, None])[:, :, None] * pos[None, None, :])
        K = 2.0 * torch.einsum("dn,dnl->dl", C, P).real
        L2 = 2 * L
        u_t = (lambda x, *d: x.permute(*d))(u, 0, 2, 1)
        Kf = (lambda x, *a, **k: torch.fft.rfft(x.float(), *a, **k))(K, L2)
        Uf = (lambda x, *a, **k: torch.fft.rfft(x.float(), *a, **k))(u_t, L2)
        y = (lambda x, *a, **k: torch.fft.irfft(x, *a, **k).to(torch.bfloat16))(Uf * Kf[None, :, :], L2)[:, :, :L]
        y = (lambda x, *d: x.permute(*d))(y, 0, 2, 1)
        return y + u * D_skip[None, None, :]

    a = _A_ref(A_x, A_wqkv, A_w_phi, A_wo)
    b = _B_ref(B_u, B_log_A_real, B_A_imag, B_C_real, B_C_imag, B_log_dt, B_D_skip)
    return torch.concatenate([a, b], axis=-1)
```

```python
import re

def v(i, n=1): return f"v{i}" if n == 1 else f"v[{i}:{i+n-1}]"
def a(i, n=1): return f"a{i}" if n == 1 else f"a[{i}:{i+n-1}]"
def s(i, n=1): return f"s{i}" if n == 1 else f"s[{i}:{i+n-1}]"

_REG = re.compile(r"(?<![\w.])(-?)(?:abs\()?([vas])(?:(\d+)|\[(\d+):(\d+)\])\)?(?![\w])")
TRANS = ("v_exp_f32","v_log_f32","v_rcp_f32","v_rsq_f32","v_sqrt_f32","v_sin_f32","v_cos_f32","v_rcp_iflag_f32")

def regs_of(op):
    op = op.strip()
    out = set()
    if op in ("vcc",): return {("s", "vcc")}
    if op in ("exec",): return {("s", "exec")}
    if op == "m0": return {("s", "m0")}
    for m in _REG.finditer(op):
        k = m.group(2)
        if m.group(3) is not None: out.add((k, int(m.group(3))))
        else:
            for r in range(int(m.group(4)), int(m.group(5)) + 1): out.add((k, r))
    return out

class Ins:
    __slots__ = ("text","op","kind","w","r","mf","ops","passes","c","states","dpp","wide_store","lds_dma")
    def __init__(self, text):
        self.text = text
        t = text.split(";")[0].strip()
        self.op = t.split()[0] if t else ""
        rest = t[len(self.op):].strip()
        ops, depth, cur = [], 0, ""
        for ch in rest:
            if ch in "[(": depth += 1
            if ch in "])": depth -= 1
            if ch == "," and depth == 0: ops.append(cur.strip()); cur = ""
            else: cur += ch
        if cur.strip(): ops.append(cur.strip())
        mods = ""
        if ops:
            parts = ops[-1].split(None, 1)
            ops[-1] = parts[0]
            mods = parts[1] if len(parts) > 1 else ""
        self.ops = ops
        op = self.op
        self.w, self.r, self.c = set(), set(), set()
        self.passes = 0; self.states = 1; self.dpp = False; self.wide_store = False; self.lds_dma = False
        if op.endswith(":") or op.startswith(".") or op == "":
            self.kind = "label" if op.endswith(":") else "dir"; self.states = 0; return
        if op.startswith("v_mfma"):
            self.kind = "mfma"
            self.passes = 8 if "32x32" in op else 4
            self.w = regs_of(ops[0]); self.r = regs_of(ops[1]) | regs_of(ops[2]); self.c = regs_of(ops[3])
        elif op.startswith("v_"):
            self.kind = "trans" if op.replace("_e32","").replace("_e64","") in TRANS else "valu"
            self.dpp = "_dpp" in op
            nd = 1
            if op.startswith(("v_add_co","v_sub_co","v_addc_co","v_subb_co","v_subrev_co")): nd = 2
            for o in ops[:nd]: self.w |= regs_of(o)
            for o in ops[nd:]: self.r |= regs_of(o)
            if op.startswith(("v_fmac","v_permlane","v_swap","v_writelane","v_dot2c")) or self.dpp: self.r |= regs_of(ops[0])
            if op.startswith(("v_permlane16_swap","v_permlane32_swap","v_swap")): self.w |= regs_of(ops[1])
            if op.startswith("v_cmpx"): self.w.add(("s","exec"))
        elif op.startswith(("buffer_","global_")):
            self.kind = "vmem"
            isload = "_load" in op
            self.lds_dma = isload and (" lds" in (" " + mods) or "load_lds" in op)
            if isload and not self.lds_dma:
                self.w = regs_of(ops[0])
                for o in ops[1:]: self.r |= regs_of(o)
                if "d16" in op: self.r |= self.w
            else:
                for o in ops: self.r |= regs_of(o)
                if "atomic" in op and "sc0" in mods: self.w = regs_of(ops[0])
            if self.lds_dma: self.r.add(("s","m0"))
            if "store" in op and op.endswith(("x3","x4")):
                self.wide_store = True
                self.c = regs_of(ops[0] if op.startswith("buffer_") else ops[1])
        elif op.startswith("ds_"):
            self.kind = "ds"
            if op.startswith(("ds_read","ds_bpermute","ds_permute","ds_swizzle")):
                self.w = regs_of(ops[0])
                for o in ops[1:]: self.r |= regs_of(o)
            else:
                for o in ops: self.r |= regs_of(o)
        elif op.startswith("s_"):
            self.kind = "salu"
            if op == "s_nop": self.states = int(ops[0], 0) + 1
            elif op.startswith(("s_cmp","s_cbranch","s_branch","s_waitcnt","s_barrier","s_endpgm","s_sleep","s_setprio","s_bitcmp")):
                for o in ops: self.r |= regs_of(o)
                if "vcc" in op: self.r.add(("s","vcc"))
            else:
                self.w = regs_of(ops[0])
                for o in ops[1:]: self.r |= regs_of(o)
                if "saveexec" in op: self.w.add(("s","exec"))
        else:
            raise ValueError("unknown instr: " + text)

def need(p, c):
    n = 0
    pv = p.kind in ("valu","trans")
    cv = c.kind in ("valu","trans")
    vw = {x for x in p.w if x[0] in "va"}
    sw = {x for x in p.w if x[0] == "s"}
    if pv:
        if c.kind == "mfma" and vw & (c.r | c.c): n = max(n, 2)
        if c.kind == "mfma" and ("s","exec") in sw: n = max(n, 4)
        if p.kind == "trans" and vw & c.r and c.kind != "salu": n = max(n, 1)
        if cv and vw & c.r:
            if c.op.startswith(("v_readlane","v_readfirstlane")): n = max(n, 1)
            if c.dpp or c.op.startswith("v_permlane"): n = max(n, 2)
            if "sdwa" in p.op or p.op.startswith("v_fma_mixhi") or p.op.startswith("v_fma_mixlo"): n = max(n, 1)
        if sw:
            if cv and sw & c.r: n = max(n, 4 if c.op.startswith(("v_readlane","v_writelane")) else 2)
            if c.kind == "vmem" and sw & c.r: n = max(n, 5)
            if c.kind == "salu" and sw & c.r: n = max(n, 5 if c.op.startswith("s_cbranch") else 2)
            if ("s","exec") in sw and cv: n = max(n, 5)
    if p.kind == "mfma":
        big = 8 if p.passes == 4 else 12
        if c.kind == "mfma":
            if vw & c.r: n = max(n, big)
            if vw & c.c and not (vw == c.c and p.passes == c.passes): n = max(n, big - 2)
            if vw & c.w and not (vw & c.c): n = max(n, big)
        elif c.kind in ("valu","trans","vmem","ds"):
            if vw & (c.r | c.w): n = max(n, big)
            if cv and p.c & c.w: n = max(n, p.passes - 1)
    if p.kind == "salu" and ("s","m0") in sw and c.lds_dma: n = max(n, 1)
    if p.wide_store and p.c & c.w: n = max(n, 2)
    return n

class Prog:
    def __init__(self): self.l = []
    def __call__(self, text):
        for t in text.split("\n"):
            t = t.strip()
            if t: self.l.append(t)
    def extend(self, lst):
        for t in lst: self(t)
    def finish(self):
        ins = [Ins(t) for t in self.l]
        W = 14
        def pad_needed(hist, c):
            d = 0; n = 0
            for p in reversed(hist):
                if d >= W: break
                if p.states:
                    k = need(p, c) - d
                    if k > n: n = k
                d += p.states
            return n
        def nop(n):
            out = []
            while n > 0:
                k = min(n, 16); out.append(Ins(f"s_nop {k-1}")); n -= k
            return out
        out = []
        for c in ins:
            if c.states:
                n = pad_needed(out[-40:], c)
                out += nop(n)
            out.append(c)
        changed = True
        while changed:
            changed = False
            lab = {x.op[:-1]: i for i, x in enumerate(out) if x.kind == "label"}
            for i, b in enumerate(out):
                if b.op.startswith(("s_cbranch","s_branch")) and b.ops[0] in lab:
                    hist = list(out[max(0, i-40):i+1]); worst = 0; d = 0
                    for c in out[lab[b.ops[0]]:lab[b.ops[0]]+40]:
                        if d >= W: break
                        if c.states:
                            worst = max(worst, pad_needed(hist, c))
                        hist.append(c); d += c.states
                        if c.op in ("s_branch","s_endpgm"): break
                    if worst:
                        out[i:i] = nop(worst); changed = True; break
        return "\n".join(("" if x.kind == "label" else "    ") + x.text for x in out)

def kd(name, vgpr=512, accum=256, sgpr=102):
    return f""".amdhsa_kernel {name}
  .amdhsa_next_free_vgpr {vgpr}
  .amdhsa_next_free_sgpr {sgpr}
  .amdhsa_accum_offset {accum}
  .amdhsa_group_segment_fixed_size 0
  .amdhsa_kernarg_size 112
  .amdhsa_user_sgpr_count 2
  .amdhsa_user_sgpr_kernarg_segment_ptr 1
  .amdhsa_system_sgpr_workgroup_id_x 1
.end_amdhsa_kernel
"""

def interleave(main, fill, start=0, end=None, per=None):
    end = len(main) if end is None else end
    out = []; k = 0; n = end - start
    for i, m in enumerate(main):
        out.append(m)
        if start <= i < end:
            tgt = -(-len(fill) * (i - start + 1) // n)
            while k < tgt: out.append(fill[k]); k += 1
    out += fill[k:]
    return out

class Ctr:
    def __init__(self, I, name, mx):
        self.I, self.name, self.mx = I, name, mx
        self.n = 0; self.done = 0; self.tags = {}
    def issue(self, text, tag=None):
        self.I(text); self.n += 1
        if tag is not None: self.tags[tag] = self.n
    def count(self, tag):
        t = self.tags[tag]
        if t <= self.done: return None
        return min(self.n - t, self.mx)
    def wait(self, *tags):
        t = max(self.tags[x] for x in tags)
        if t <= self.done: return
        k = min(self.n - t, self.mx)
        self.I(f"s_waitcnt {self.name}({k})"); self.done = self.n - k
    def drained(self): self.done = self.n
    def drain(self):
        if self.done < self.n: self.I(f"s_waitcnt {self.name}(0)")
        self.done = self.n
```

```python
from asmlib import *
from genB import fbits, LOG2E, P_X, P_WQKV, P_WPHI, P_WO, P_OUT, P_DBG, P_WS, S_WAVE, S_XCD, S_J

WS_PART, PX, PFLAG = 0x000000, 0x40000, 245760
WS_RED, RX = 0x200000, 0x4000
WS_O, OX, OFLAG = 0x300000, 0x15000, 81920
WS_SIZE = 0x800000
OOB = 0x40000000
NSYNC = 160
SPIN = 200000
L_ZERO, L_KVF = 0, 2048
BUF = [10240 + 20480*i for i in range(4)] + [96256 + 20480*i for i in range(3)]
L_V, L_PHI = 92160, 116736
A_LDS = 157696
def gbuf(g): return BUF[(g + 4) % 7]
S_TX, S_HX, S_TJ, S_HJ, S_TT, S_HG, S_ROT, S_C, S_T, S_T2, S_WKV, S_SO, S_LW, S_CT, S_SPIN, S_R2 = range(36, 52)
SRD_X, SRD_W, SRD_WS, SRD_WO, SRD_M = 52, 56, 60, 64, 68
S_CC = 72
S_XO = 74; S_T3 = 75
LANE, N_, KQ, R_, CC = 1, 2, 3, 4, 5
T0, T1, T2, T3 = 6, 7, 8, 9
XO = 10; WA = 12; WR = 17; WOA = 20; WOR = 21; DIAG = 29; FLG = 30; CNT = 31
KACC, VACC, RING = 32, 72, 112
AX, APHI = 0, 160

def srd(I, d, p, size):
    I(f"s_mov_b32 s{d}, s{p}"); I(f"s_and_b32 s{d+1}, s{p+1}, 0xffff"); I(f"s_mov_b32 s{d+2}, {size}"); I(f"s_mov_b32 s{d+3}, 0x20000")

def lane_fields(I):
    I(f"v_and_b32 v{LANE}, 63, v0"); I(f"v_and_b32 v{N_}, 15, v0"); I(f"v_bfe_u32 v{KQ}, v0, 4, 2"); I(f"v_bfe_u32 v{R_}, v0, 2, 2"); I(f"v_and_b32 v{CC}, 3, v0")

def spin(I, name, load, cmp):
    I(f"s_mov_b32 s{S_SPIN}, {SPIN}")
    I(f"{name}:")
    I(load); I("s_waitcnt vmcnt(0)"); I(cmp)
    I(f"s_cbranch_vccz {name}_ok")
    I("s_sleep 2")
    I(f"s_sub_u32 s{S_SPIN}, s{S_SPIN}, 1"); I(f"s_cmp_lg_u32 s{S_SPIN}, 0"); I(f"s_cbranch_scc1 {name}")
    I(f"{name}_ok:")

def run_pass(I, lg, uses, ring, nring, L, fill=None, pre=None, premf=None, wgran=2):
    fill = fill or {}; pre = pre or {}; premf = premf or {}
    n = len(uses)
    def rd(u, k):
        if k == 0:
            for f in pre.get(u, []): f()
        lg.issue(uses[u][0](ring + 4*(u % nring))[k], tag=("f", id(uses), u) if k == 1 else None)
    for u in range(min(L, n)): rd(u, 0); rd(u, 1)
    for u in range(n):
        if u % wgran == 0: lg.wait(("f", id(uses), min(u + wgran - 1, n - 1)))
        for f in premf.get(u, []): f()
        ms = uses[u][1](ring + 4*(u % nring))
        for k, m in enumerate(ms):
            I(m)
            if u + L < n and k < 2: rd(u + L, k)
        if u + L < n and len(ms) < 2: rd(u + L, 1)
        for f in fill.get(u, []): f()

def wo_group(I, vm, g, tag):
    o = []
    def head():
        I(f"s_add_u32 s{S_T}, s{S_R2}, {g}"); I(f"s_and_b32 s{S_T}, s{S_T}, 3"); I(f"s_lshl_b32 s{S_T}, s{S_T}, 2"); I(f"s_add_u32 s{S_T}, s{S_T}, s{S_WAVE}")
        I(f"s_mul_i32 s{S_SO}, s{S_T}, {40*1280}")
    for i in range(5):
        def f(i=i):
            if i == 0: head()
            I(f"s_add_u32 m0, s{S_LW}, {gbuf(15+g) + 1024*i}")
            vm.issue(f"buffer_load_dwordx4 v{WOA}, {s(SRD_WO,4)}, s{S_SO} offen lds", tag)
            if i < 4: I(f"s_add_u32 s{S_SO}, s{S_SO}, {8*1280}")
        o.append(f)
    return o

def wo_setup(I):
    I(f"v_lshrrev_b32 v{T0}, 3, v{LANE}"); I(f"v_mul_u32_u24 v{T0}, 1280, v{T0}")
    I(f"v_and_b32 v{T1}, 7, v{LANE}"); I(f"v_lshlrev_b32 v{T2}, 1, v{KQ}"); I(f"v_xor_b32 v{T1}, v{T1}, v{T2}"); I(f"v_lshl_add_u32 v{WOA}, v{T1}, 4, v{T0}")
    I(f"s_lshl_b32 s{S_T}, s{S_CT}, 7"); I(f"v_add_u32 v{WOA}, s{S_T}, v{WOA}")
    I(f"s_mul_i32 s{S_LW}, s{S_WAVE}, 5120")

def softmax(PK, E, OUT, M):
    mm = [f"v_max3_f32 v{M}, v{PK}, v{PK+1}, v{PK+2}", f"v_min3_f32 v{M+1}, v{PK}, v{PK+1}, v{PK+2}"]
    for i in range(3, 19, 2): mm += [f"v_max3_f32 v{M}, v{M}, v{PK+i}, v{PK+i+1}", f"v_min3_f32 v{M+1}, v{M+1}, v{PK+i}, v{PK+i+1}"]
    mm += [f"v_max_f32 v{M}, v{M}, v{PK+19}", f"v_min_f32 v{M+1}, v{M+1}, v{PK+19}"]
    mm += [f"v_mul_f32 v{M}, s{S_CC+1}, v{M}", f"v_mul_f32 v{M+1}, s{S_CC}, v{M+1}"]
    o = []
    for i in range(20):
        h = i & 1
        o.append(f"v_pk_fma_f32 {v(E+2*i,2)}, {v(PK+i-h,2)}, {s(S_CC,2)}, {v(M,2)} op_sel:[{h},0,0] op_sel_hi:[{h},1,1]")
    for i in range(20):
        o += [f"v_exp_f32 v{E+2*i}, v{E+2*i}", f"v_exp_f32 v{E+2*i+1}, v{E+2*i+1}"]
        if i == 2: o.append(f"v_pk_add_f32 {v(M,2)}, {v(E,2)}, {v(E+2,2)}")
        elif i > 2: o.append(f"v_pk_add_f32 {v(M,2)}, {v(M,2)}, {v(E+2*i-2,2)}")
    o.append(f"v_pk_add_f32 {v(M,2)}, {v(M,2)}, {v(E+38,2)}")
    o += [f"v_rcp_f32 v{M}, v{M}", f"v_rcp_f32 v{M+1}, v{M+1}"]
    for i in range(20):
        o.append(f"v_pk_mul_f32 {v(E+2*i,2)}, {v(E+2*i,2)}, {v(M,2)}")
        if i > 0: o.append(f"v_cvt_pk_bf16_f32 v{OUT+i-1}, v{E+2*i-2}, v{E+2*i-1}")
    o.append(f"v_cvt_pk_bf16_f32 v{OUT+19}, v{E+38}, v{E+39}")
    return mm, o

def feature_map(I, ACC, KB, PK, side):
    for T in range(2):
        for i in range(10): I(f"v_cvt_pk_bf16_f32 v{KB+12*T+i}, v{ACC+20*T+2*i}, v{ACC+20*T+2*i+1}")
    mf = []
    for T in range(2):
        for ph in range(3):
            for t in range(5):
                d = v(PK+20*T+4*t, 4)
                mf.append(f"v_mfma_f32_16x16x32_bf16 {d}, {a(APHI+12*t+4*ph,4)}, {v(KB+12*T+4*ph,4)}, {d if ph else 0}")
    return mf

def gen_A(I, stamp, D=2):
    vm = Ctr(I, "vmcnt", 63); lg = Ctr(I, "lgkmcnt", 15)
    I(f"s_lshr_b32 s{S_TX}, s{S_XCD}, 1"); I(f"s_and_b32 s{S_HX}, s{S_XCD}, 1"); I(f"s_and_b32 s{S_TJ}, s{S_J}, 3"); I(f"s_lshr_b32 s{S_HJ}, s{S_J}, 2")
    I(f"s_lshl_b32 s{S_TT}, s{S_TX}, 2"); I(f"s_add_u32 s{S_TT}, s{S_TT}, s{S_TJ}")
    I(f"s_lshl_b32 s{S_HG}, s{S_HX}, 2"); I(f"s_add_u32 s{S_HG}, s{S_HG}, s{S_HJ}")
    I(f"s_add_u32 s{S_CT}, s{S_HG}, s{S_HX}"); I(f"s_mov_b32 s{S_R2}, s{S_HJ}")
    I(f"s_add_u32 s{S_T}, s{S_TJ}, s{S_HJ}"); I(f"s_and_b32 s{S_T}, s{S_T}, 3"); I(f"s_mul_i32 s{S_T}, s{S_T}, 5"); I(f"s_lshr_b32 s{S_T}, s{S_T}, 1")
    I(f"s_xor_b32 s{S_T2}, s{S_HX}, s{S_TX}"); I(f"s_and_b32 s{S_T2}, s{S_T2}, 1"); I(f"s_add_u32 s{S_ROT}, s{S_T}, s{S_T2}"); I(f"s_mov_b32 s{S_C}, s{S_ROT}")
    lane_fields(I)
    I(f"s_lshl_b32 s{S_T}, s{S_TT}, 2"); I(f"s_add_u32 s{S_T}, s{S_T}, s{S_WAVE}"); I(f"s_mul_i32 s{S_T}, s{S_T}, {32*1280}")
    I(f"v_mul_u32_u24 v{XO}, 1280, v{N_}"); I(f"v_lshl_add_u32 v{XO}, v{KQ}, 4, v{XO}"); I(f"v_add_u32 v{XO}, s{S_T}, v{XO}"); I(f"v_add_u32 v{XO+1}, 20480, v{XO}")
    I(f"s_mul_i32 s{S_T}, s{S_HG}, 160")
    for i in range(5):
        I(f"v_add_u32 v{T0}, {64*i}, v{LANE}"); I(f"v_mul_u32_u24 v{T1}, 6554, v{T0}"); I(f"v_lshrrev_b32 v{T1}, 16, v{T1}")
        I(f"v_mul_u32_u24 v{T2}, 10, v{T1}"); I(f"v_sub_u32 v{T0}, v{T0}, v{T2}")
        I(f"v_lshrrev_b32 v{T2}, 1, v{T1}"); I(f"v_xor_b32 v{T2}, v{T2}, v{T1}"); I(f"v_and_b32 v{T2}, 4, v{T2}"); I(f"v_mul_u32_u24 v{T2}, 3, v{T2}"); I(f"v_xor_b32 v{T1}, v{T1}, v{T2}")
        I(f"v_mul_u32_u24 v{T1}, 3840, v{T1}"); I(f"v_lshl_add_u32 v{T0}, v{T0}, 4, v{T1}")
        I(f"s_sub_u32 s{S_T2}, s{S_T}, {1024*i if i < 4 else 0}"); I(f"v_add_u32 v{WA+i}, s{S_T2}, v{T0}")
    I(f"s_lshr_b32 s{S_T}, s{S_WAVE}, 1"); I(f"s_mul_i32 s{S_WKV}, s{S_T}, 122880"); I(f"s_and_b32 s{S_T}, s{S_WAVE}, 1"); I(f"s_add_u32 s{S_T}, s{S_T}, 1"); I(f"s_mul_i32 s{S_T}, s{S_T}, 1280"); I(f"s_add_u32 s{S_WKV}, s{S_WKV}, s{S_T}")
    I(f"s_mul_i32 s{S_LW}, s{S_WAVE}, 5120")
    I("s_waitcnt lgkmcnt(0)")
    srd(I, SRD_X, P_X, 2048*1280); srd(I, SRD_W, P_WQKV, 640*3840)
    def wdma(g, i):
        if i in (0, 4): I(f"s_add_u32 m0, s{S_LW}, {gbuf(g) + 1024*i}")
        vm.issue(f"buffer_load_dwordx4 v{WA+i}, {s(SRD_W,4)}, s{S_SO} offen offset:{1024*i if i < 4 else 0} lds", ("G", g))
    def group(g):
        o = []
        if g < 10:
            def head():
                I(f"s_mul_i32 s{S_SO}, s{S_C}, 245760"); I(f"s_add_u32 s{S_SO}, s{S_SO}, s{S_WKV}"); I(f"s_lshl_b32 s{S_XO}, s{S_C}, 7")
                I(f"s_add_u32 s{S_C}, s{S_C}, 1"); I(f"s_cmp_eq_u32 s{S_C}, 10"); I(f"s_cselect_b32 s{S_C}, 0, s{S_C}")
            def xl(T, ks): vm.issue(f"buffer_load_dwordx4 {a(AX+80*T+8*g+4*ks,4)}, v{XO+T}, {s(SRD_X,4)}, s{S_XO} offen offset:{64*ks}", ("G", g))
            o = [lambda: (head(), wdma(g, 0)), lambda: xl(0, 0), lambda: xl(0, 1), lambda: wdma(g, 1), lambda: wdma(g, 2), lambda: xl(1, 0), lambda: xl(1, 1), lambda: wdma(g, 3), lambda: wdma(g, 4)]
        else:
            def head():
                I(f"s_lshr_b32 s{S_T}, s{S_WAVE}, 1"); I(f"s_add_u32 s{S_T}, s{S_T}, s{S_ROT}"); I(f"s_add_u32 s{S_T}, s{S_T}, {2*(g-10)}")
                I(f"s_sub_u32 s{S_T2}, s{S_T}, 10"); I(f"s_cselect_b32 s{S_T}, s{S_T}, s{S_T2}"); I(f"s_lshl_b32 s{S_T}, s{S_T}, 1")
                I(f"s_and_b32 s{S_T2}, s{S_WAVE}, 1"); I(f"s_add_u32 s{S_T}, s{S_T}, s{S_T2}"); I(f"s_mul_i32 s{S_SO}, s{S_T}, 122880")
            o = [lambda: (head(), wdma(g, 0))] + [(lambda i=i: wdma(g, i)) for i in range(1, 5)]
        return o
    for f in group(0): f()
    srd(I, SRD_M, P_WPHI, 32*800); srd(I, SRD_WS, P_WS, WS_SIZE)
    I(f"v_lshlrev_b32 v{T0}, 4, v0"); I(f"s_mul_i32 s{S_T}, s{S_HG}, 3200"); I(f"s_lshl_b32 s{S_T2}, s{S_WAVE}, 10"); I(f"s_add_u32 m0, s{S_T2}, {L_KVF}")
    vm.issue(f"buffer_load_dwordx4 v{T0}, {s(SRD_M,4)}, s{S_T} offen lds")
    S_PB, S_OB = 76, 77
    I(f"s_mul_i32 s{S_T}, s{S_XCD}, {PX}"); I(f"s_lshl_b32 s{S_T2}, s{S_TJ}, 2"); I(f"s_add_u32 s{S_T2}, s{S_T2}, s{S_HJ}"); I(f"s_lshl_b32 s{S_T2}, s{S_T2}, 9")
    I(f"s_add_u32 s{S_T}, s{S_T}, s{S_T2}"); I(f"s_add_u32 s{S_T}, s{S_T}, {WS_PART+PFLAG}")
    I(f"v_lshl_add_u32 v{T0}, v{CC}, 7, s{S_T}")
    I(f"s_lshl_b32 s{S_T}, s{S_XCD}, 2"); I(f"s_add_u32 s{S_T}, s{S_T}, s{S_TJ}"); I(f"s_mul_i32 s{S_T}, s{S_T}, {OX}"); I(f"s_lshl_b32 s{S_T2}, s{S_HJ}, 7")
    I(f"s_add_u32 s{S_T}, s{S_T}, s{S_T2}"); I(f"s_add_u32 s{S_T}, s{S_T}, {WS_O+OFLAG}")
    I(f"v_lshl_add_u32 v{T1}, v{CC}, 9, s{S_T}")
    I(f"v_cmp_gt_u32 vcc, 4, v0"); I(f"v_cndmask_b32 v{T0}, v{T1}, v{T0}, vcc"); I(f"v_mov_b32 v{T1}, {OOB}"); I(f"v_cmp_gt_u32 vcc, 8, v0"); I(f"v_cndmask_b32 v{T0}, v{T1}, v{T0}, vcc")
    I(f"v_mov_b32 v{T2}, 0"); I(f"v_mov_b32 v{T3}, 0")
    vm.issue(f"buffer_store_dword v{T2}, v{T0}, {s(SRD_WS,4)}, 0 offen sc1")
    I(f"v_cmp_eq_u32 vcc, 0, v0"); I(f"v_cndmask_b32 v{CNT}, v{T1}, v{T2}, vcc")
    I(f"v_lshlrev_b32 v{T0}, 3, v0"); lg.issue(f"ds_write_b64 v{T0}, {v(T2,2)} offset:{L_ZERO}")
    for g in range(1, D):
        for f in group(g): f()
    I(f"v_lshrrev_b32 v{T0}, 1, v{KQ}"); I(f"v_lshlrev_b32 v{T0}, 2, v{T0}"); I(f"v_and_b32 v{T1}, 1, v{KQ}"); I(f"v_add_u32 v{T0}, v{T0}, v{T1}"); I(f"v_lshl_add_u32 v{T0}, v{T0}, 2, v{R_}")
    I(f"v_lshl_add_u32 v{T0}, v{T0}, 2, v{CC}"); I(f"v_mul_u32_u24 v{WR}, 40, v{T0}"); I(f"v_add_u32 v{WR+1}, 0x10000, v{WR}"); I(f"v_add_u32 v{WR+2}, 0x20000, v{WR}")
    I(f"v_mul_u32_u24 v{T0}, 800, v{KQ}"); I(f"v_mul_u32_u24 v{T1}, 40, v{R_}"); I(f"v_add_u32 v{T0}, v{T0}, v{T1}"); I(f"v_add_u32 v{T0}, {L_KVF}, v{T0}")
    I(f"v_cmp_eq_u32 vcc, v{CC}, v{KQ}"); I(f"v_cndmask_b32 v{DIAG}, {L_ZERO}, v{T0}, vcc")
    for t in range(5): I(f"v_accvgpr_write_b32 a{APHI+12*t+10}, 0"); I(f"v_accvgpr_write_b32 a{APHI+12*t+11}, 0")
    I(f"s_mov_b32 s{S_CC}, {fbits(LOG2E)}"); I(f"s_mov_b32 s{S_CC+1}, {fbits(-LOG2E)}")
    srd(I, SRD_WO, P_WO, 640*1280)
    wo_setup(I)
    def wread(base, t):
        def f(reg):
            o = []
            for jj in range(2):
                ad = base + 1280*jj + 8*t
                o.append(f"ds_read_b64_tr_b16 {v(reg+2*jj,2)}, v{WR+(ad>>16)} offset:{ad & 0xffff}")
            return o
        return f
    def wmf(acc, t, ks):
        def f(reg): return [f"v_mfma_f32_16x16x32_bf16 {v(acc+20*T+4*t,4)}, {v(reg,4)}, {a(AX+80*T+4*ks,4)}, {v(acc+20*T+4*t,4) if ks else 0}" for T in range(2)]
        return f
    def gate(g):
        def f():
            vm.wait(("G", g))
            if g == 0: lg.drain()
            I("s_barrier")
            if g == 0: stamp(1)
        return f
    uses = []; pre = {}; fill = {}
    for c in range(10):
        pre[20*c] = [gate(c)]
        for ks in range(2):
            for m in range(2):
                for t in range(5): uses.append((wread(gbuf(c) + 5120*(2*ks+m), t), wmf(VACC if m else KACC, t, 2*c+ks)))
        gl = group(c + D)
        for k, f in enumerate(gl): fill.setdefault(20*c + (k*16)//len(gl), []).append(f)
    def after_g1():
        srd(I, SRD_M, P_DBG, 256); I(f"v_mov_b32 v{T0}, 1")
        vm.issue(f"buffer_atomic_add v{T0}, v{CNT}, {s(SRD_M,4)}, 0 offen sc1")
    fill.setdefault(21, []).append(after_g1)
    k = 0
    for t in range(5):
        for j in range(5):
            fill.setdefault(22 + k, []).append(lambda t=t, j=j: lg.issue(f"ds_read_b64_tr_b16 {a(APHI+12*t+2*j,2)}, v{DIAG} offset:{160*j+8*t}")); k += 1
    run_pass(I, lg, uses, RING, 8, 4, fill, pre)
    stamp(2)
    KB, PK, E, M, OUT, VB = 112, 136, 176, 216, 220, 240
    rest = []
    for g in range(10 + D, 14): rest += group(g)
    for T in range(2): I(f"v_mov_b32 v{KB+12*T+10}, 0"); I(f"v_mov_b32 v{KB+12*T+11}, 0")
    mf = feature_map(I, KACC, KB, PK, None)
    SV, SP = 32, 33
    side = [f"s_lshl_b32 s{S_T3}, s{S_WAVE}, 5", f"v_lshl_add_u32 v{T0}, v{KQ}, 7, v{N_}", f"v_add_u32 v{T0}, s{S_T3}, v{T0}",
            f"v_mul_u32_u24 v{SV}, 48, v{T0}", f"v_add_u32 v{SV}, {L_V}, v{SV}", f"v_mul_u32_u24 v{SP}, 80, v{T0}", f"v_add_u32 v{SP}, {L_PHI}, v{SP}",
            f"v_mov_b32 v{VB+10}, 0x3f803f80", f"v_mov_b32 v{VB+11}, 0x3f803f80"]
    for T in range(2):
        for i in range(10):
            side.append(f"v_cvt_pk_bf16_f32 v{VB+i}, v{VACC+20*T+2*i}, v{VACC+20*T+2*i+1}")
            if i in (3, 7, 9): side.append(f"ds_write_b128 v{SV}, {v(VB+4*(i//4),4)} offset:{768*T+16*(i//4)}")
    mm0, sm0 = softmax(PK, E, OUT, M); mm1, sm1 = softmax(PK+20, E, OUT, M+2)
    def emit(lst):
        for x in lst:
            if callable(x): x()
            elif x.startswith("ds_"): lg.issue(x)
            else: I(x)
    emit(interleave(mf, side, 0, 22)); emit(mm0); emit(mm1)
    I("s_barrier")
    def with_writes(sm, T):
        o = []
        for x in sm:
            o.append(x)
            if x.startswith("v_cvt_pk"):
                i = int(x.split()[1][1:-1]) - OUT
                if i % 4 == 3: o.append(f"ds_write_b128 v{SP}, {v(OUT+i-3,4)} offset:{1280*T+4*(i-3)}")
        return o
    emit(interleave(with_writes(sm0, 0) + with_writes(sm1, 1), rest, 0, 200))
    RV, RP = 34, 35
    I(f"v_lshlrev_b32 v{T0}, 3, v{KQ}"); I(f"v_lshl_add_u32 v{T0}, v{R_}, 1, v{T0}"); I(f"s_lshl_b32 s{S_T}, s{S_WAVE}, 7"); I(f"v_add_u32 v{T0}, s{S_T}, v{T0}")
    I(f"v_mul_u32_u24 v{RV}, 48, v{T0}"); I(f"v_lshl_add_u32 v{RV}, v{CC}, 3, v{RV}"); I(f"v_add_u32 v{RV}, {L_V}, v{RV}")
    I(f"v_mul_u32_u24 v{RP}, 80, v{T0}"); I(f"v_lshl_add_u32 v{RP}, v{CC}, 3, v{RP}"); I(f"v_add_u32 v{RP}, {L_PHI}, v{RP}")
    PO = 36
    I(f"v_mul_u32_u24 v{PO}, 40, v{KQ}"); I(f"v_add_lshl_u32 v{PO}, v{PO}, v{N_}, 4")
    I(f"s_lshl_b32 s{S_T}, s{S_TJ}, 2"); I(f"s_add_u32 s{S_T}, s{S_T}, s{S_HJ}"); I(f"s_lshl_b32 s{S_T}, s{S_T}, 2"); I(f"s_add_u32 s{S_T}, s{S_T}, s{S_WAVE}")
    I(f"s_mul_i32 s{S_T2}, s{S_XCD}, {PX}"); I(f"s_mul_i32 s{S_PB}, s{S_T}, 3840"); I(f"s_add_u32 s{S_PB}, s{S_PB}, s{S_T2}")
    I(f"s_lshl_b32 s{S_T}, s{S_T}, 7"); I(f"s_add_u32 s{S_T}, s{S_T}, s{S_T2}"); I(f"s_add_u32 s{S_T}, s{S_T}, {WS_PART+PFLAG}")
    I(f"v_mov_b32 v{T0}, {OOB}"); I(f"v_mov_b32 v{T1}, s{S_T}"); I(f"v_cmp_eq_u32 vcc, 0, v{LANE}"); I(f"v_cndmask_b32 v{FLG}, v{T0}, v{T1}, vcc")
    lg.drain(); I("s_barrier")
    stamp(3)
    F = 112; KV = 40
    for sg in range(4):
        for j in range(5):
            for jj in range(2):
                ad, st, col = (RV, 48, j) if j < 2 else (RP, 80, j - 2)
                lg.issue(f"ds_read_b64_tr_b16 {v(F+20*sg+4*j+2*jj,2)}, v{ad} offset:{st*(32*sg+jj)+32*col}", ("kv", sg))
        if sg >= 1:
            lg.wait(("kv", sg-1))
            for b in range(2):
                for al in range(3): I(f"v_mfma_f32_16x16x32_bf16 {v(KV+12*b+4*al,4)}, {v(F+20*(sg-1)+4*b,4)}, {v(F+20*(sg-1)+8+4*al,4)}, {v(KV+12*b+4*al,4) if sg > 1 else 0}")
    lg.wait(("kv", 3))
    for b in range(2):
        for al in range(3): I(f"v_mfma_f32_16x16x32_bf16 {v(KV+12*b+4*al,4)}, {v(F+60+4*b,4)}, {v(F+68+4*al,4)}, {v(KV+12*b+4*al,4)}")
    for b in range(2):
        for al in range(3):
            lo = "0x00ff00ff" if al == 2 else "-1"
            if al != 1: I(f"s_mov_b32 exec_lo, {lo}"); I(f"s_mov_b32 exec_hi, {'0' if b else lo}")
            vm.issue(f"buffer_store_dwordx4 {v(KV+12*b+4*al,4)}, v{PO}, {s(SRD_WS,4)}, s{S_PB} offen offset:{2560*b+256*al} sc1", "part")
    I("s_mov_b64 exec, -1")
    vm.wait(("G", 13)); I("s_barrier")
    stamp(4)
    QACC = 72
    uses = []; pre = {}; fill = {}
    for ks in range(20):
        for t in range(5): uses.append((wread(gbuf(10 + ks//4) + 5120*(ks % 4), t), wmf(QACC, t, ks)))
    pre[80] = [gate(14)]
    early = group(14) + wo_group(I, vm, 0, "wo") + wo_group(I, vm, 1, "wo")
    for k, f in enumerate(early): fill.setdefault(1 + 4*k, []).append(f)
    def publish():
        vm.wait("part"); I(f"v_mov_b32 v{T0}, 1")
        vm.issue(f"buffer_store_dword v{T0}, v{FLG}, {s(SRD_WS,4)}, 0 offen sc1")
    fill.setdefault(34, []).append(publish)
    fill.setdefault(66, []).append(lambda: (I(f"v_mov_b32 v{T1}, 0"), vm.issue(f"buffer_load_dword v{CNT}, v{T1}, {s(SRD_M,4)}, 0 offen sc1", "cnt")))
    run_pass(I, lg, uses, RING, 8, 4, fill, pre)
    stamp(5)
    late = wo_group(I, vm, 2, "wo") + wo_group(I, vm, 3, "wo")
    PQ = 32
    for T in range(2): I(f"v_mov_b32 v{KB+12*T+10}, 0"); I(f"v_mov_b32 v{KB+12*T+11}, 0")
    mf = feature_map(I, QACC, KB, PK, None)
    mm0, sm0 = softmax(PK, E, PQ, M); mm1, sm1 = softmax(PK+20, E, PQ+20, M+2)
    S_RB = 76
    side = [f"s_lshl_b32 s{S_T3}, s{S_HJ}, 1", f"s_add_u32 s{S_T3}, s{S_T3}, s{S_HX}", f"s_mul_i32 s{S_RB}, s{S_T3}, {RX}", f"s_lshl_b32 s{S_T3}, s{S_WAVE}, 11",
            f"s_add_u32 s{S_RB}, s{S_RB}, s{S_T3}", f"s_add_u32 s{S_RB}, s{S_RB}, {WS_RED}",
            f"v_mul_u32_u24 v{T0}, 1920, v{KQ}", f"v_lshl_add_u32 v{T0}, v{R_}, 3, v{T0}", f"v_add_u32 v{T0}, {L_KVF}, v{T0}",
            f"v_cmp_eq_u32 vcc, v{CC}, v{KQ}", f"v_cndmask_b32 v{DIAG}, {L_ZERO}, v{T0}, vcc"]
    emit(interleave(mf, side + late, 0, 28)); emit(mm0); emit(mm1)
    emit(sm0); emit(sm1)
    stamp(6)
    vm.wait("cnt")
    I(f"v_cmp_ne_u32 vcc, {NSYNC}, v{CNT}"); I("s_cbranch_vccz A_cnt_ok")
    I(f"v_mov_b32 v{T1}, 0")
    spin(I, "A_cnt", f"buffer_load_dword v{CNT}, v{T1}, {s(SRD_M,4)}, 0 offen sc1", f"v_cmp_ne_u32 vcc, {NSYNC}, v{CNT}")
    I(f"v_mov_b32 v{T1}, 1920")
    spin(I, "A_red", f"buffer_load_dword v{T0}, v{T1}, {s(SRD_WS,4)}, s{S_RB} offen sc1", f"v_cmp_ne_u32 vcc, 1, v{T0}")
    vm.drained()
    stamp(7)
    I(f"v_lshlrev_b32 v{T0}, 4, v{LANE}")
    I(f"buffer_load_dwordx4 {v(72,4)}, v{T0}, {s(SRD_WS,4)}, s{S_RB} offen sc1"); I(f"buffer_load_dwordx4 {v(76,4)}, v{T0}, {s(SRD_WS,4)}, s{S_RB} offen offset:896 sc1")
    I(f"s_mul_i32 s{S_T}, s{S_WAVE}, 1920"); I(f"v_add_u32 v{T0}, s{S_T}, v{T0}")
    I("s_waitcnt vmcnt(1)"); I(f"ds_write_b128 v{T0}, {v(72,4)} offset:{L_KVF}"); I("s_waitcnt vmcnt(0)"); I(f"ds_write_b128 v{T0}, {v(76,4)} offset:{L_KVF+896}")
    I("s_waitcnt lgkmcnt(0)"); I("s_barrier"); lg.drained()
    stamp(8)
    NA = 144
    uses = []
    for t in (5, 0, 1, 2, 3, 4):
        for ph in range(5):
            uses.append((lambda reg, t=t, ph=ph: [f"ds_read_b64_tr_b16 {v(reg+2*jj,2)}, v{DIAG} offset:{320*t+64*ph+32*jj}" for jj in range(2)],
                         lambda reg, t=t, ph=ph: [f"v_mfma_f32_16x16x32_bf16 {v(NA+24*T+4*t,4)}, {v(reg,4)}, {v(PQ+20*T+4*ph,4)}, {v(NA+24*T+4*t,4) if ph else 0}" for T in range(2)]))
    OB = 72
    RC = 96
    fill = {}
    fill[8] = [lambda: [I(f"v_add_f32 v{RC+T}, {fbits(1e-6)}, v{NA+24*T+20}") for T in range(2)]]
    fill[9] = [lambda: [I(f"v_rcp_f32 v{RC+T}, v{RC+T}") for T in range(2)]]
    def norm(t, T):
        return [f"v_mul_f32 v{NA+24*T+4*t+e}, v{RC+T}, v{NA+24*T+4*t+e}" for e in range(4)] + [f"v_cvt_pk_bf16_f32 v{OB+12*T+2*t+h}, v{NA+24*T+4*t+2*h}, v{NA+24*T+4*t+2*h+1}" for h in range(2)]
    for t in range(3):
        l = norm(t, 0) + norm(t, 1)
        for k in range(4): fill.setdefault(5*(t+2) + 3 + k, []).append(lambda x=l[3*k:3*k+3]: I.extend(x))
    run_pass(I, lg, uses, RING, 8, 4, fill)
    I(f"s_lshl_b32 s{S_T}, s{S_XCD}, 2"); I(f"s_add_u32 s{S_T}, s{S_T}, s{S_TJ}"); I(f"s_mul_i32 s{S_T}, s{S_T}, {OX}"); I(f"s_add_u32 s{S_T}, s{S_T}, {WS_O}")
    I(f"s_lshl_b32 s{S_T2}, s{S_WAVE}, 2"); I(f"s_add_u32 s{S_T2}, s{S_T2}, s{S_HJ}"); I(f"s_mul_i32 s{S_OB}, s{S_T2}, 5120"); I(f"s_add_u32 s{S_OB}, s{S_OB}, s{S_T}")
    I(f"s_lshl_b32 s{S_T2}, s{S_T2}, 7"); I(f"s_add_u32 s{S_T}, s{S_T}, s{S_T2}"); I(f"s_add_u32 s{S_T}, s{S_T}, {OFLAG}")
    I(f"v_lshlrev_b32 v{T2}, 4, v{LANE}"); I(f"v_lshlrev_b32 v{T3}, 3, v{LANE}")
    for T in range(2): I(f"buffer_store_dwordx4 {v(OB+12*T,4)}, v{T2}, {s(SRD_WS,4)}, s{S_OB} offen offset:{2048*T} sc1")
    for T in range(2):
        I.extend(norm(3, T)); I(f"buffer_store_dwordx4 {v(OB+12*T+4,4)}, v{T2}, {s(SRD_WS,4)}, s{S_OB} offen offset:{2048*T+1024} sc1")
    I(f"s_add_u32 s{S_OB}, s{S_OB}, 4096")
    for T in range(2):
        I.extend(norm(4, T)); I(f"buffer_store_dwordx2 {v(OB+12*T+8,2)}, v{T3}, {s(SRD_WS,4)}, s{S_OB} offen offset:{512*T} sc1")
    I(f"v_mov_b32 v{T0}, {OOB}"); I(f"v_mov_b32 v{T1}, s{S_T}"); I(f"v_cmp_eq_u32 vcc, 0, v{LANE}"); I(f"v_cndmask_b32 v{FLG}, v{T0}, v{T1}, vcc")
    stamp(9)

def gen_G2(I, stamp):
    vm = Ctr(I, "vmcnt", 63); lg = Ctr(I, "lgkmcnt", 15)
    I("G2:")
    I(f"v_mul_u32_u24 v{T0}, 20, v{KQ}"); I(f"v_add_lshl_u32 v{T0}, v{T0}, v{R_}, 7"); I(f"v_lshl_add_u32 v{T0}, v{CC}, 3, v{T0}")
    I(f"v_and_b32 v{T1}, 1, v{KQ}"); I(f"v_lshlrev_b32 v{T1}, 1, v{T1}"); I(f"v_lshrrev_b32 v{T2}, 1, v{R_}"); I(f"v_or_b32 v{T1}, v{T1}, v{T2}")
    for t in range(4):
        I(f"v_xor_b32 v{T2}, {t}, v{T1}"); I(f"v_lshl_add_u32 v{WOR+t}, v{T2}, 5, v{T0}"); I(f"v_add_u32 v{WOR+4+t}, {BUF[5]}, v{WOR+t}")
    S_O0 = 76
    I(f"s_lshl_b32 s{S_T}, s{S_TX}, 3"); I(f"s_add_u32 s{S_T}, s{S_T}, s{S_TJ}"); I(f"s_mul_i32 s{S_O0}, s{S_T}, {OX}"); I(f"s_add_u32 s{S_O0}, s{S_O0}, {WS_O}")
    I(f"v_bfe_u32 v{T0}, v{LANE}, 2, 1"); I(f"v_mul_u32_u24 v{T0}, {4*OX}, v{T0}"); I(f"v_lshl_add_u32 v{T0}, v{CC}, 7, v{T0}")
    I(f"s_lshl_b32 s{S_T}, s{S_WAVE}, 9"); I(f"s_add_u32 s{S_T}, s{S_T}, {OFLAG}"); I(f"v_add_u32 v{T0}, s{S_T}, v{T0}")
    I(f"v_lshlrev_b32 v{XO}, 4, v{LANE}"); I(f"v_lshlrev_b32 v{XO+1}, 3, v{LANE}"); I(f"v_add_u32 v{XO+1}, 4096, v{XO+1}")
    srd(I, SRD_M, P_OUT, 2048*2560)
    OO = WA
    I(f"v_mul_u32_u24 v{OO}, 2560, v{N_}"); I(f"v_and_b32 v{T1}, 1, v{KQ}"); I(f"v_lshl_add_u32 v{OO}, v{T1}, 5, v{OO}"); I(f"v_lshrrev_b32 v{T1}, 1, v{KQ}"); I(f"v_lshl_add_u32 v{OO}, v{T1}, 4, v{OO}")
    I(f"s_lshl_b32 s{S_T}, s{S_TT}, 2"); I(f"s_add_u32 s{S_T}, s{S_T}, s{S_WAVE}"); I(f"s_mul_i32 s{S_T}, s{S_T}, {32*2560}"); I(f"s_lshl_b32 s{S_T2}, s{S_CT}, 7"); I(f"s_add_u32 s{S_T}, s{S_T}, s{S_T2}")
    I(f"v_add_u32 v{OO}, s{S_T}, v{OO}"); I(f"v_add_u32 v{OO+1}, {16*2560}, v{OO}")
    I(f"v_mov_b32 v{T1}, 1")
    I("s_waitcnt vmcnt(0)"); I("s_barrier")
    I(f"buffer_store_dword v{T1}, v{FLG}, {s(SRD_WS,4)}, 0 offen sc1")
    stamp(10)
    spin(I, "G2_o", f"buffer_load_dword v{T1}, v{T0}, {s(SRD_WS,4)}, s{S_O0} offen sc1", f"v_cmp_ne_u32 vcc, 1, v{T1}")
    stamp(11)
    I(f"s_mul_i32 s{S_T}, s{S_WAVE}, {4*5120}"); I(f"s_add_u32 s{S_O0}, s{S_O0}, s{S_T}")
    def oload(p):
        o = []
        def head():
            if p % 2 == 0:
                I(f"s_add_u32 s{S_T}, s{S_R2}, {p//2}"); I(f"s_bfe_u32 s{S_T2}, s{S_T}, 0x10001"); I(f"s_mul_i32 s{S_T2}, s{S_T2}, {4*OX}")
                I(f"s_and_b32 s{S_T}, s{S_T}, 1"); I(f"s_mul_i32 s{S_T}, s{S_T}, 10240"); I(f"s_add_u32 s{S_SO}, s{S_O0}, s{S_T}"); I(f"s_add_u32 s{S_SO}, s{S_SO}, s{S_T2}")
            else: I(f"s_add_u32 s{S_SO}, s{S_SO}, 5120")
        for h in range(3):
            for T in range(2):
                def f(h=h, T=T):
                    if h == 0 and T == 0: head()
                    if h < 2: vm.issue(f"buffer_load_dwordx4 {a(AX+80*T+10*p+4*h,4)}, v{XO}, {s(SRD_WS,4)}, s{S_SO} offen offset:{2048*T+1024*h} sc1", ("o", 10*p+4*h+3, T))
                    else: vm.issue(f"buffer_load_dwordx2 {a(AX+80*T+10*p+8,2)}, v{XO+1}, {s(SRD_WS,4)}, s{S_SO} offen offset:{512*T} sc1", ("o", 10*p+9, T))
                o.append(f)
        return o
    loads = []
    for p in range(8): loads += oload(p)
    PRE = 12
    for f in loads[:PRE]: f()
    ACC = 32
    uses = []; fill = {}; premf = {}
    for ks in range(20):
        for t in range(4):
            def rd(reg, ks=ks, t=t):
                o = []
                for jj in range(2):
                    j = 2*ks + jj; p, jm = divmod(j, 5); g = p // 2
                    b = gbuf(15+g); hi = b >= BUF[5]
                    o.append(f"ds_read_b64_tr_b16 {v(reg+2*jj,2)}, v{WOR+(4 if hi else 0)+(t ^ (2*(jm&1)))} offset:{b - (BUF[5] if hi else 0) + 128*(80*(p%2)+4*jm)}")
                return o
            uses.append((rd, lambda reg, ks=ks, t=t: [f"v_mfma_f32_16x16x32_bf16 {v(ACC+16*T+4*t,4)}, {v(reg,4)}, {a(AX+80*T+4*ks,4)}, {v(ACC+16*T+4*t,4) if ks else 0}" for T in range(2)]))
        last = 4*ks + 3; p, e = divmod(last, 10)
        premf[4*ks] = [lambda tg=10*p + (3 if e < 4 else 7 if e < 8 else 9): vm.wait(("o", tg, 0), ("o", tg, 1))]
    rest = loads[PRE:]
    for k, f in enumerate(rest): fill.setdefault((k*5)//3, []).append(f)
    run_pass(I, lg, uses, RING, 8, 4, fill, None, premf)
    stamp(12)
    for T in range(2):
        for P in range(2):
            q = 64 + 8*T + 4*P; c0 = ACC + 16*T + 8*P
            for i in range(4): I(f"v_cvt_pk_bf16_f32 v{q+i}, v{c0+2*i}, v{c0+2*i+1}")
            I(f"v_permlane16_swap_b32 v{q}, v{q+2}"); I(f"v_permlane16_swap_b32 v{q+1}, v{q+3}")
            I(f"buffer_store_dwordx4 {v(q,4)}, v{OO+T}, {s(SRD_M,4)}, 0 offen offset:{64*P}")

def gen_H(I, stamp):
    vm = Ctr(I, "vmcnt", 63)
    I(f"s_lshr_b32 s{S_TX}, s{S_XCD}, 1"); I(f"s_and_b32 s{S_HX}, s{S_XCD}, 1"); I(f"s_mov_b32 s{S_TJ}, s{S_J}")
    I(f"s_lshl_b32 s{S_TT}, s{S_TX}, 2"); I(f"s_add_u32 s{S_TT}, s{S_TT}, s{S_TJ}")
    I(f"s_mul_i32 s{S_CT}, s{S_HX}, 5"); I(f"s_add_u32 s{S_CT}, s{S_CT}, 4"); I(f"s_mov_b32 s{S_R2}, s{S_TJ}")
    lane_fields(I); wo_setup(I)
    S_RB = 76; S_PB = 77
    I(f"s_mul_i32 s{S_RB}, s{S_XCD}, {RX}"); I(f"s_lshl_b32 s{S_T}, s{S_TJ}, 11"); I(f"s_add_u32 s{S_RB}, s{S_RB}, s{S_T}"); I(f"s_add_u32 s{S_RB}, s{S_RB}, {WS_RED}")
    I(f"s_add_u32 s{S_T}, s{S_RB}, 1920")
    I(f"v_mov_b32 v{T0}, {OOB}"); I(f"v_mov_b32 v{T1}, s{S_T}"); I(f"v_cmp_eq_u32 vcc, 0, v0"); I(f"v_cndmask_b32 v{FLG}, v{T0}, v{T1}, vcc")
    I(f"v_mov_b32 v{T2}, 0"); I(f"v_cndmask_b32 v{CNT}, v{T0}, v{T2}, vcc")
    I("s_waitcnt lgkmcnt(0)")
    srd(I, SRD_WS, P_WS, WS_SIZE); srd(I, SRD_WO, P_WO, 640*1280); srd(I, SRD_M, P_DBG, 256)
    I(f"buffer_store_dword v{T2}, v{FLG}, {s(SRD_WS,4)}, 0 offen sc1")
    I(f"v_mov_b32 v{T0}, 1"); I("s_waitcnt vmcnt(0)")
    I(f"buffer_atomic_add v{T0}, v{CNT}, {s(SRD_M,4)}, 0 offen sc1")
    for g in range(4):
        for f in wo_group(I, vm, g, "wo"): f()
    I(f"s_lshl_b32 s{S_T}, s{S_TX}, 2"); I(f"s_add_u32 s{S_T}, s{S_T}, s{S_TJ}"); I(f"s_mul_i32 s{S_T2}, s{S_HX}, {PX}")
    I(f"s_mul_i32 s{S_PB}, s{S_T}, 3840"); I(f"s_add_u32 s{S_PB}, s{S_PB}, s{S_T2}")
    I(f"s_lshl_b32 s{S_T}, s{S_T}, 7"); I(f"s_add_u32 s{S_T}, s{S_T}, s{S_T2}"); I(f"s_add_u32 s{S_T3}, s{S_T}, {WS_PART+PFLAG}")
    I(f"v_mul_u32_u24 v{T3}, {2*PX}, v{R_}"); I(f"v_lshl_add_u32 v{T3}, v{CC}, 11, v{T3}")
    I(f"v_mov_b32 v{T1}, 0")
    stamp(1)
    spin(I, "H_cnt", f"buffer_load_dword v{CNT}, v{T1}, {s(SRD_M,4)}, 0 offen sc1", f"v_cmp_ne_u32 vcc, {NSYNC}, v{CNT}")
    stamp(2)
    spin(I, "H_part", f"buffer_load_dword v{T0}, v{T3}, {s(SRD_WS,4)}, s{S_T3} offen sc1", f"v_cmp_ne_u32 vcc, 1, v{T0}")
    stamp(3)
    vm.drained()
    I(f"v_min_u32 v{T0}, 239, v0"); I(f"v_lshlrev_b32 v{T1}, 3, v{T0}"); I(f"v_lshlrev_b32 v{T0}, 4, v{T0}")
    for k in range(16):
        I(f"s_add_u32 s{S_SO}, s{S_PB}, {WS_PART + (k>>2)*2*PX + (k&3)*16*3840}")
        vm.issue(f"buffer_load_dwordx4 {v(32+4*k,4)}, v{T0}, {s(SRD_WS,4)}, s{S_SO} offen sc1", k)
    for k in range(1, 16):
        vm.wait(k)
        I(f"v_pk_add_f32 {v(32,2)}, {v(32,2)}, {v(32+4*k,2)}"); I(f"v_pk_add_f32 {v(34,2)}, {v(34,2)}, {v(34+4*k,2)}")
    I(f"v_cvt_pk_bf16_f32 v32, v32, v33"); I(f"v_cvt_pk_bf16_f32 v33, v34, v35")
    I(f"buffer_store_dwordx2 {v(32,2)}, v{T1}, {s(SRD_WS,4)}, s{S_RB} offen sc1")
    stamp(4)
    I("s_branch G2")
```

```python
from asmlib import *
import struct
def fbits(x): return "0x%08x" % struct.unpack("<I", struct.pack("<f", x))[0]
LOG2E = 1.4426950408889634
INV2PI = 0.15915494309189535

P_X, P_WQKV, P_WPHI, P_WO, P_U, P_LAR, P_AI, P_CR, P_CI, P_LDT, P_DSK, P_OUT, P_DBG, P_WS = [4+2*i for i in range(14)]
S_WAVE = 32
S_XCD = 33; S_J = 34

B_RAW = 0
B_Q = 32768
QS = 4352
Q_PAIR = 60
Q_DUP = Q_PAIR + 4*401
B_TAB = B_Q + 8*QS
TS = 240
B_UT = B_TAB
CS = 4592
UPRE = 496
B_LDS = B_TAB + 4*64*TS + 64
assert 8*CS <= 4*64*TS
assert Q_PAIR + 4*642 <= Q_DUP + 4*256 and Q_DUP + 4*641 <= QS and (Q_DUP) % 8 == 0

def cmul(d, x, y):
    return [f"v_pk_mul_f32 {v(d,2)}, {v(x,2)}, {v(y,2)} op_sel:[0,0] op_sel_hi:[0,1]",
            f"v_pk_fma_f32 {v(d,2)}, {v(x,2)}, {v(y,2)}, {v(d,2)} op_sel:[1,1,0] op_sel_hi:[1,0,1] neg_lo:[1,0,0]"]

def merge(*streams):
    streams = [list(x) for x in streams if x]
    tot = sum(len(x) for x in streams); pos = [0]*len(streams); out = []
    for _ in range(tot):
        k = min((i for i in range(len(streams)) if pos[i] < len(streams[i])), key=lambda i: (pos[i]+0.5)/len(streams[i]))
        out.append(streams[k][pos[k]]); pos[k] += 1
    return out

def gen_B(I, stamp=lambda n: None):
    S_CG = 36; S_T = 37; S_LDT = 38; S_DSK = 39; SRD_U = 40; SRD_O = 44; S_BLK = 48; S_CNT = 49; S_SOFF = 50; S_T2 = 51
    LANE = 1; T0, T1, T2, T3 = 2, 3, 4, 5
    LA, AI, CR, CI = 8, 12, 16, 20
    NDT, DT2PI, DT2 = 6, 7, 11
    DSK0, DSK1 = 15, 19
    UOFF = 23
    R0 = 24; R1, R2, R3, S1, S2, S3 = 25, 29, 33, 37, 41, 45
    UA = 49
    TW, TRA, TRB = 50, 51, 52
    Z1, Z8, W, C0 = 54, 56, 58, 60
    I(f"s_mul_i32 s{S_CG}, s{S_XCD}, 10")
    I(f"s_add_u32 s{S_CG}, s{S_CG}, s{S_J}")
    I(f"v_and_b32 v{LANE}, 63, v0")
    I(f"s_lshl_b32 s{S_T}, s{S_CG}, 2"); I(f"s_add_u32 s{S_T}, s{S_T}, s{S_WAVE}")
    I(f"s_mul_i32 s{S_T2}, s{S_T}, 768")
    I(f"v_mul_u32_u24 v{T0}, 12, v{LANE}"); I(f"v_add_u32 v{T0}, s{S_T2}, v{T0}")
    I(f"s_lshl_b32 s{S_T}, s{S_T}, 2")
    I(f"v_mul_u32_u24 v{UOFF}, 1280, v0"); I(f"s_lshl_b32 s{S_T2}, s{S_CG}, 4"); I(f"v_add_u32 v{UOFF}, s{S_T2}, v{UOFF}")
    I(f"s_and_b32 s{S_BLK}, s{S_J}, 7")
    I("s_waitcnt lgkmcnt(0)")
    I(f"s_load_dword s{S_LDT}, {s(P_LDT,2)}, s{S_T}"); I(f"s_load_dword s{S_DSK}, {s(P_DSK,2)}, s{S_T}")
    for r, p in ((LA, P_LAR), (AI, P_AI), (CR, P_CR), (CI, P_CI)):
        I(f"global_load_dwordx3 {v(r,3)}, v{T0}, {s(p,2)}")
    I(f"s_mov_b32 s{SRD_U}, s{P_U}"); I(f"s_and_b32 s{SRD_U+1}, s{P_U+1}, 0xffff"); I(f"s_mov_b32 s{SRD_U+2}, {2048*1280}"); I(f"s_mov_b32 s{SRD_U+3}, 0x20000")
    I(f"s_mov_b32 s{SRD_O}, s{P_OUT}"); I(f"s_and_b32 s{SRD_O+1}, s{P_OUT+1}, 0xffff"); I(f"s_mov_b32 s{SRD_O+2}, {2048*2560}"); I(f"s_mov_b32 s{SRD_O+3}, 0x20000")
    def udma():
        return [f"s_lshl_b32 s{S_T}, s{S_BLK}, 2", f"s_add_u32 s{S_T}, s{S_T}, s{S_WAVE}", f"s_lshl_b32 m0, s{S_T}, 10",
                f"s_mul_i32 s{S_SOFF}, s{S_BLK}, {256*1280}",
                f"buffer_load_dwordx4 v{UOFF}, {s(SRD_U,4)}, s{S_SOFF} offen lds",
                f"s_add_u32 s{S_BLK}, s{S_BLK}, 1", f"s_and_b32 s{S_BLK}, s{S_BLK}, 7"]
    I.extend(udma())
    N_, KQ = 62, 63
    I(f"v_and_b32 v{N_}, 15, v{LANE}"); I(f"v_lshrrev_b32 v{KQ}, 4, v{LANE}")
    I(f"v_lshlrev_b32 v{T0}, 3, v{KQ}"); I(f"v_sub_u32 v{T0}, v{N_}, v{T0}")
    I(f"s_mul_i32 s{S_T}, s{S_WAVE}, {2*QS}"); I(f"s_add_u32 s{S_T}, s{S_T}, {B_Q}")
    I(f"v_lshlrev_b32 v{R0}, 2, v{T0}"); I(f"s_add_u32 s{S_T2}, s{S_T}, {Q_PAIR + 4*(16-6)}"); I(f"v_add_u32 v{R0}, s{S_T2}, v{R0}")
    YF = 64; PB, DB = 65, 66
    I(f"v_cvt_f32_i32 v{YF}, v{T0}")
    off = -4*(0x4300 - 128)
    I(f"s_add_u32 s{S_T2}, s{S_T}, {(Q_PAIR + off) & 0xffffffff}"); I(f"v_mov_b32 v{PB}, s{S_T2}")
    I(f"s_add_u32 s{S_T2}, s{S_T}, {(Q_DUP + off) & 0xffffffff}"); I(f"v_mov_b32 v{DB}, s{S_T2}")
    streams = []
    for k, (R, Y) in enumerate(((R1,288),(R2,544),(R3,1056),(S1,256),(S2,512),(S3,1024))):
        for w in range(4):
            t = 68 + 2*((4*k+w) % 4); sp = 52 + 2*((4*k+w) % 4)
            streams.append([f"v_add_f32 v{t}, {fbits(Y+16-2*w)}, v{YF}", f"v_add_f32 v{t+1}, {fbits(Y+15-2*w)}, v{YF}",
              f"v_cvt_pk_bf16_f32 v{t}, v{t}, v{t+1}", f"v_lshrrev_b32 v{t+1}, 16, v{t}", f"v_and_b32 v{t}, 0xffff, v{t}",
              f"v_cmp_eq_u32 {s(sp,2)}, v{t}, v{t+1}", f"v_cndmask_b32 v{t+1}, v{PB}, v{DB}, {s(sp,2)}", f"v_lshl_add_u32 v{R+w}, v{t}, 2, v{t+1}"])
    for g in range(0, 24, 4):
        for i in range(8):
            for st in streams[g:g+4]: I(st[i])
    I(f"v_lshlrev_b32 v{UA}, 5, v{N_}"); I(f"v_lshl_add_u32 v{UA}, v{KQ}, 4, v{UA}")
    I(f"s_mul_i32 s{S_T2}, s{S_WAVE}, {2*CS}"); I(f"s_add_u32 s{S_T2}, s{S_T2}, {B_UT + UPRE - 32 - 7*64}"); I(f"v_add_u32 v{UA}, s{S_T2}, v{UA}")
    I(f"s_mul_i32 s{S_T2}, s{S_WAVE}, {64*TS}"); I(f"s_add_u32 s{S_T2}, s{S_T2}, {B_TAB}")
    I(f"v_mul_u32_u24 v{TW}, {TS}, v{LANE}"); I(f"v_add_u32 v{TW}, s{S_T2}, v{TW}")
    I(f"v_lshrrev_b32 v{T0}, 5, v{LANE}"); I(f"v_bfe_u32 v{T1}, v{LANE}, 3, 1"); I(f"v_lshl_add_u32 v{T0}, v{T1}, 3, v{T0}"); I(f"v_mul_u32_u24 v{T0}, {TS}, v{T0}")
    I(f"v_bfe_u32 v{T1}, v{LANE}, 4, 1"); I(f"v_lshl_add_u32 v{T0}, v{T1}, 5, v{T0}")
    I(f"v_and_b32 v{T1}, 3, v{LANE}"); I(f"v_lshl_add_u32 v{T0}, v{T1}, 3, v{T0}"); I(f"v_add_u32 v{T0}, s{S_T2}, v{T0}")
    I(f"v_bfe_u32 v{T1}, v{LANE}, 2, 1")
    I(f"v_lshl_add_u32 v{TRB}, v{T1}, 6, v{T0}")
    I(f"v_mul_u32_u24 v{T1}, 48, v{T1}"); I(f"v_add3_u32 v{TRA}, v{T0}, v{T1}, 64"); I(f"v_add_u32 v{TRA}, 64, v{TRA}")
    I(f"v_mul_u32_u24 v{T0}, {QS}, v{KQ}"); I(f"v_lshl_add_u32 v{T0}, v{N_}, 2, v{T0}"); I(f"v_add_u32 v{T0}, s{S_T}, v{T0}"); I(f"v_mov_b32 v{T1}, 0")
    I("s_mov_b32 exec_hi, 0"); I(f"ds_write_b32 v{T0}, v{T1} offset:{Q_PAIR-60}"); I("s_mov_b64 exec, -1")
    I.extend(udma())
    I("s_waitcnt lgkmcnt(0)")
    I(f"s_lshl_b32 s{S_T}, s{S_LDT}, 16"); I(f"s_and_b32 s{S_T2}, s{S_LDT}, 0xffff0000")
    I(f"v_mov_b32 v{T0}, s{S_T}"); I(f"v_mov_b32 v{T1}, s{S_T2}"); I(f"v_cmp_gt_u32 vcc, 32, v{LANE}"); I(f"v_cndmask_b32 v{T0}, v{T1}, v{T0}, vcc")
    I(f"v_mul_f32 v{T0}, {fbits(LOG2E)}, v{T0}"); I(f"v_exp_f32 v{T0}, v{T0}"); I(f"v_cvt_pk_bf16_f32 v{T0}, v{T0}, v{T0}"); I(f"v_and_b32 v{T0}, 0xffff0000, v{T0}")
    I(f"v_mul_f32 v{NDT}, {fbits(-LOG2E)}, v{T0}"); I(f"v_mul_f32 v{DT2PI}, {fbits(INV2PI)}, v{T0}"); I(f"v_add_f32 v{DT2}, v{T0}, v{T0}")
    I(f"s_lshl_b32 s{S_T}, s{S_DSK}, 16"); I(f"s_and_b32 s{S_T2}, s{S_DSK}, 0xffff0000")
    I(f"v_cmp_eq_u32 vcc, 0, v{LANE}"); I(f"v_mov_b32 v{T0}, s{S_T}"); I(f"v_mov_b32 v{T1}, s{S_T2}")
    I(f"v_cndmask_b32 v{DSK0}, 0, v{T0}, vcc"); I(f"v_cndmask_b32 v{DSK1}, 0, v{T1}, vcc")
    ACC = 64
    for r in range(32): I(f"v_mov_b32 v{ACC+r}, 0")
    X = 96
    def setup():
        o = []
        for k, r in enumerate((LA, AI, CR, CI)): o.append(f"v_lshlrev_b32 v{X+k}, 16, v{r}")
        o.append(f"v_mul_f32 v{X}, {fbits(LOG2E)}, v{X}")
        o.append(f"v_mul_f32 v{X+1}, v{DT2PI}, v{X+1}")
        o.append(f"v_exp_f32 v{X}, v{X}")
        o.append(f"v_mul_f32 v{C0}, v{DT2}, v{X+2}"); o.append(f"v_mul_f32 v{C0+1}, v{DT2}, v{X+3}")
        o.append(f"v_cvt_pk_bf16_f32 v{X}, v{X}, v{X}")
        o.append(f"v_mul_f32 v{X+4}, {fbits(-8.0)}, v{X+1}"); o.append(f"v_mul_f32 v{X+5}, {fbits(256.0)}, v{X+1}")
        o.append(f"v_and_b32 v{X}, 0xffff0000, v{X}")
        o.append(f"v_fract_f32 v{X+1}, v{X+1}"); o.append(f"v_fract_f32 v{X+4}, v{X+4}"); o.append(f"v_fract_f32 v{X+5}, v{X+5}")
        o.append(f"v_mul_f32 v{X}, v{NDT}, v{X}")
        o.append(f"v_cos_f32 v{Z1}, v{X+1}"); o.append(f"v_sin_f32 v{Z1+1}, v{X+1}")
        o.append(f"v_mul_f32 v{X+2}, {fbits(8.0)}, v{X}"); o.append(f"v_mul_f32 v{X+3}, {fbits(256.0)}, v{X}")
        o.append(f"v_cos_f32 v{Z8}, v{X+4}"); o.append(f"v_sin_f32 v{Z8+1}, v{X+4}")
        o.append(f"v_cos_f32 v{W}, v{X+5}"); o.append(f"v_sin_f32 v{W+1}, v{X+5}")
        o.append(f"v_exp_f32 v{X}, v{X}"); o.append(f"v_exp_f32 v{X+2}, v{X+2}"); o.append(f"v_exp_f32 v{X+3}, v{X+3}")
        for r in (LA, AI, CR, CI):
            o.append(f"v_alignbit_b32 v{r}, v{r+1}, v{r}, 16"); o.append(f"v_alignbit_b32 v{r+1}, v{r+2}, v{r+1}, 16"); o.append(f"v_lshrrev_b32 v{r+2}, 16, v{r+2}")
        for z, m in ((Z1, X), (Z8, X+2), (W, X+3)):
            o.append(f"v_mul_f32 v{z}, v{m}, v{z}"); o.append(f"v_mul_f32 v{z+1}, v{m}, v{z+1}")
        return o
    I("s_waitcnt vmcnt(2)")
    stamp(1)
    I.extend(setup())
    I(f"s_mov_b32 s{S_CNT}, 6")
    I(".p2align 3")
    I("B_round:")
    BE, BO, Z16 = 112, 116, 120
    PR, PI = 124, 132
    sb = cmul(Z16, Z8, Z8)
    sb += [f"v_cvt_pk_bf16_f32 v{PR}, 1.0, v{Z8}", f"v_cvt_pk_bf16_f32 v{PI}, 0, v{Z8+1}"]
    pe, po = None, Z8
    for p in range(1, 16):
        ne, no = BE + 2*(p & 1), BO + 2*(p & 1)
        if p == 1:
            e = Z16; sb += cmul(no, po, Z16)
        else:
            e = ne; m1 = cmul(ne, pe, Z16); m2 = cmul(no, po, Z16); sb += [m1[0], m2[0], m1[1], m2[1]]
        pe, po = e, no
        buf = 4*((p >> 2) & 1)
        sb += [f"v_cvt_pk_bf16_f32 v{PR+buf+(p&3)}, v{pe}, v{po}", f"v_cvt_pk_bf16_f32 v{PI+buf+(p&3)}, v{pe+1}, v{po+1}"]
        if p & 3 == 3:
            sb += [f"ds_write_b128 v{TW}, {v(PR+buf,4)} offset:{16*(p>>2)}", f"ds_write_b128 v{TW}, {v(PI+buf,4)} offset:{64+16*(p>>2)}"]
    CA = 140
    CB = 154
    AR, AIm = 180, 192
    def c(aa): return C0 if aa == 0 else CA + 2*(aa-1)
    ex = {256:0, 258:1, 260:2, 262:3, 512:4, 516:5, 768:6, 772:7, 1024:8, 1280:9, 1536:10, 1792:11, 2048:12}
    def reg(e): return c(e) if e < 8 else CB + 2*ex[e]
    order = [0,1,2,3,4,5,6,7, 256,258,512,516, 260,262,768,772, 1024,1280,2048,2048, 1536,1792]
    sa = []
    ch1 = [(e, e-1, Z1) for e in range(1, 8)] + [(258,2,W),(260,4,W),(262,6,W),(516,260,W),(772,516,W)]
    ch2 = [(256,0,W),(512,256,W),(768,512,W),(1024,768,W),(1280,1024,W),(1536,1280,W),(1792,1536,W),(2048,1792,W)]
    done = {0}; emitted = set()
    def flush():
        o = []
        for p in range(11):
            if p not in emitted and order[2*p] in done and order[2*p+1] in done:
                emitted.add(p)
                o += [f"v_cvt_pk_bf16_f32 v{AR+p}, v{reg(order[2*p])}, v{reg(order[2*p+1])}", f"v_cvt_pk_bf16_f32 v{AIm+p}, v{reg(order[2*p])+1}, v{reg(order[2*p+1])+1}"]
                q = p // 4
                if all(x in emitted for x in range(4*q, min(4*q+4, 11))):
                    o += [f"ds_write_b128 v{TW}, {v(AR+4*q,4)} offset:{128+16*q}", f"ds_write_b128 v{TW}, {v(AIm+4*q,4)} offset:{176+16*q}"]
        return o
    for k in range(12):
        m = [cmul(reg(d), reg(x), y) for d, x, y in ([ch1[k]] + ([ch2[k]] if k < 8 else []))]
        sa += [q[0] for q in m] + [q[1] for q in m]
        done.add(ch1[k][0])
        if k < 8: done.add(ch2[k][0])
        sa += flush()
    body = merge(sb, sa)
    mid = len(body)//3
    I.extend(body[:mid]); I.extend(udma()); I.extend(body[mid:])
    FR = 112
    rd = []; mf = []
    for ch in range(2):
        for sg in range(4):
            fa = FR + 8*(4*ch+sg); fb = fa + 4
            for jj in range(2):
                pp = 4*sg + 2*jj; o = (32*ch + (pp & 7) + 16*(pp >> 3))*TS
                rd.append(f"ds_read_b64_tr_b16 {v(fa+2*jj,2)}, v{TRA} offset:{o}")
                rd.append(f"ds_read_b64_tr_b16 {v(fb+2*jj,2)}, v{TRB} offset:{o}")
            mf.append(f"v_mfma_f32_32x32x16_bf16 {v(ACC+16*ch,16)}, {v(fa,4)}, {v(fb,4)}, {v(ACC+16*ch,16)}")
    st = setup(); per = -(-len(st)//8)
    I.extend(rd[:12])
    for k in range(8):
        left = rd[12+4*k:16+4*k]
        outstanding_after = min(12 + 4*k, 32) - 4*(k+1)
        I(f"s_waitcnt lgkmcnt({outstanding_after})"); I(mf[k]); I.extend(left); I.extend(st[per*k:per*(k+1)])
    I(f"s_sub_u32 s{S_CNT}, s{S_CNT}, 1"); I(f"s_cmp_lg_u32 s{S_CNT}, 0"); I("s_cbranch_scc1 B_round")
    stamp(2)
    J, HF = 96, 97; A0, A1, A2, A3 = 98, 99, 100, 101
    I(f"v_and_b32 v{J}, 31, v{LANE}"); I(f"v_lshrrev_b32 v{HF}, 5, v{LANE}")
    I(f"s_mul_i32 s{S_T}, s{S_WAVE}, {2*QS}"); I(f"s_add_u32 s{S_T}, s{S_T}, {B_Q}")
    I(f"v_lshl_add_u32 v{A1}, v{J}, 1, v{HF}"); I(f"v_lshl_add_u32 v{A0}, v{A1}, 4, s{S_T}"); I(f"v_lshl_add_u32 v{A1}, v{A1}, 3, s{S_T}")
    I(f"v_lshl_add_u32 v{A3}, v{HF}, 8, s{S_T}"); I(f"v_lshl_add_u32 v{A2}, v{J}, 3, v{A3}"); I(f"v_lshl_add_u32 v{A3}, v{J}, 2, v{A3}")
    I(f"v_add_f32 v{ACC}, v{DSK0}, v{ACC}"); I(f"v_add_f32 v{ACC+16}, v{DSK1}, v{ACC+16}")
    fix = []
    for ch in range(2):
        f = ACC + 16*ch; q = 112 + 16*ch; PB_ = Q_PAIR + ch*QS; DB_ = Q_DUP + ch*QS
        for i in range(4): I(f"v_cvt_pk_bf16_f32 v{q+i}, v{f+min(i+1,3)}, v{f+i}")
        I(f"ds_write_b128 v{A0}, {v(q,4)} offset:{PB_+4}")
        fix.append(f"ds_write_b16_d16_hi v{A0}, v{q} offset:{PB_}")
        for k, (ad, base) in enumerate(((A1, 256), (A2, 384))):
            g = f + 4 + 2*k; r = q + 4 + 4*k
            I(f"v_cvt_pk_bf16_f32 v{r}, v{g}, v{g}"); I(f"v_cvt_pk_bf16_f32 v{r+1}, v{g+1}, v{g+1}")
            I(f"v_cvt_pk_bf16_f32 v{r+2}, v{g+1}, v{g}"); I(f"v_cvt_pk_bf16_f32 v{r+3}, v{g+1}, v{g+1}")
            I(f"ds_write_b64 v{ad}, {v(r,2)} offset:{DB_+4*base}"); I(f"ds_write_b64 v{ad}, {v(r+2,2)} offset:{PB_+4*base+4}")
            fix.append(f"ds_write_b16 v{ad}, v{r} offset:{PB_+4*base}")
        for i in range(3): I(f"v_cvt_pk_bf16_f32 v{q+12+i}, v{f+8+i}, v{f+8+i}")
        for i in range(2):
            I(f"ds_write_b32 v{A3}, v{q+12+i} offset:{DB_+4*(512+32*i)}"); I(f"ds_write_b32 v{A3}, v{q+12+i} offset:{PB_+4*(512+32*i)+4}")
            fix.append(f"ds_write_b16 v{A3}, v{q+12+i} offset:{PB_+4*(512+32*i)}")
    I.extend(fix)
    I("s_mov_b64 exec, 1")
    for ch in range(2):
        q = 112 + 16*ch
        I(f"ds_write_b32 v{A3}, v{q+14} offset:{Q_DUP+ch*QS+4*640}"); I(f"ds_write_b16 v{A3}, v{q+14} offset:{Q_PAIR+ch*QS+4*640}")
    I("s_mov_b64 exec, -1")
    RA, WA = 96, 97
    I(f"v_lshlrev_b32 v{T0}, 4, v{KQ}"); I(f"v_bfe_u32 v{T1}, v{LANE}, 1, 1"); I(f"v_lshl_add_u32 v{T0}, v{T1}, 3, v{T0}")
    I(f"v_bfe_u32 v{T1}, v{LANE}, 2, 2"); I(f"v_add_u32 v{T0}, v{T0}, v{T1}"); I(f"v_and_b32 v{T1}, 1, v{LANE}"); I(f"v_lshlrev_b32 v{T1}, 3, v{T1}")
    I(f"v_lshl_add_u32 v{RA}, v{T0}, 4, v{T1}"); I(f"s_lshl_b32 s{S_T}, s{S_WAVE}, 13"); I(f"v_add_u32 v{RA}, s{S_T}, v{RA}")
    I(f"v_and_b32 v{T0}, 7, v{LANE}"); I(f"v_mul_u32_u24 v{T0}, {CS}, v{T0}"); I(f"v_lshrrev_b32 v{T1}, 3, v{LANE}"); I(f"v_lshl_add_u32 v{WA}, v{T1}, 4, v{T0}")
    I(f"s_lshl_b32 s{S_T}, s{S_WAVE}, 10"); I(f"s_add_u32 s{S_T}, s{S_T}, {B_UT+UPRE}"); I(f"v_add_u32 v{WA}, s{S_T}, v{WA}")
    I(f"v_lshrrev_b32 v{T0}, 5, v0"); I(f"v_mul_u32_u24 v{T0}, {CS}, v{T0}"); I(f"v_and_b32 v{T1}, 31, v0"); I(f"v_min_u32 v{T1}, 30, v{T1}"); I(f"v_lshl_add_u32 v{T0}, v{T1}, 4, v{T0}"); I(f"v_add_u32 v{T0}, {B_UT}, v{T0}")
    for r in range(4): I(f"v_mov_b32 v{100+r}, 0")
    I("s_waitcnt vmcnt(0) lgkmcnt(0)"); I("s_barrier")
    stamp(3)
    for k in range(8):
        for jj in range(2): I(f"ds_read_b64_tr_b16 {v(112+4*k+2*jj,2)}, v{RA} offset:{B_RAW+1024*k+64*jj}")
        if k == 3: I(f"ds_write_b128 v{T0}, {v(100,4)}")
    for k in range(8):
        I(f"s_waitcnt lgkmcnt({min(15, 14-2*k+k+(1 if k < 4 else 0))})")
        I(f"ds_write_b128 v{WA}, {v(112+4*k,4)} offset:{128*k}")
    I("s_waitcnt lgkmcnt(0)"); I("s_barrier")
    stamp(4)
    CACC = 64; UF = [96, 160]; KF = [128, 192]
    def reads(s0):
        b = s0 & 1; o = []
        for i in range(8):
            o.append(f"ds_read_b128 {v(UF[b]+4*i,4)}, v{UA} offset:{64*(8*i - s0 + 7)}")
            sidx = s0 + 8*i
            for w in range(4):
                if i == 0: ad, of = R0, 128*sidx + 8*(3-w)
                elif s0 == 0 and i in (1, 2, 4): ad, of = {1:S1, 2:S2, 4:S3}[i] + w, 0
                elif i == 1: ad, of = R1 + w, 64*(sidx - 9)
                elif i < 4: ad, of = R2 + w, 32*(sidx - 17)
                else: ad, of = R3 + w, 16*(sidx - 33)
                o.append(f"ds_read_b32 v{KF[b]+4*i+w}, v{ad} offset:{of}")
        return o
    YW = 53
    I(f"v_lshlrev_b32 v{T0}, 3, v{KQ}"); I(f"v_sub_u32 v{YW}, v{UA}, v{T0}")
    I(f"s_mov_b32 s{S_CNT}, 2")
    I(".p2align 3")
    I("B_conv:")
    I.extend(reads(0))
    for s0 in range(8):
        b = s0 & 1
        I("s_waitcnt lgkmcnt(0)"); I("s_nop 0")
        mm = []
        for i in range(8):
            for j in range(8 - i):
                mu = i + j
                cin = "0" if (s0 == 0 and i == 0) else v(CACC+4*mu, 4)
                mm.append(f"v_mfma_f32_16x16x32_bf16 {v(CACC+4*mu,4)}, {v(KF[b]+4*i,4)}, {v(UF[b]+4*j,4)}, {cin}")
        I.extend(interleave(mm, reads(s0+1) if s0 < 7 else [], 0, 28))
    for mu in range(8):
        I(f"v_cvt_pk_bf16_f32 v{96+2*mu}, v{CACC+4*mu}, v{CACC+4*mu+1}"); I(f"v_cvt_pk_bf16_f32 v{97+2*mu}, v{CACC+4*mu+2}, v{CACC+4*mu+3}")
        I(f"ds_write_b64 v{YW}, {v(96+2*mu,2)} offset:{512*mu + 32 + 7*64}")
    for r in range(R0, R0+25): I(f"v_add_u32 v{r}, {QS}, v{r}")
    I(f"v_add_u32 v{UA}, {CS}, v{UA}"); I(f"v_add_u32 v{YW}, {CS}, v{YW}")
    I(f"s_sub_u32 s{S_CNT}, s{S_CNT}, 1"); I(f"s_cmp_lg_u32 s{S_CNT}, 0"); I("s_cbranch_scc1 B_conv")
    stamp(5)
    I(f"v_bfe_u32 v{T0}, v{LANE}, 2, 2"); I(f"v_mul_u32_u24 v{T0}, {CS}, v{T0}"); I(f"v_lshl_add_u32 v{T0}, v{KQ}, 5, v{T0}")
    I(f"v_and_b32 v{T1}, 3, v{LANE}"); I(f"v_lshl_add_u32 v{T0}, v{T1}, 3, v{T0}")
    I(f"s_lshl_b32 s{S_T}, s{S_WAVE}, 10"); I(f"s_add_u32 s{S_T}, s{S_T}, {B_UT+UPRE}"); I(f"v_add_u32 v{T0}, s{S_T}, v{T0}")
    I(f"v_mul_u32_u24 v{T1}, 2560, v{LANE}"); I(f"s_mul_i32 s{S_T}, s{S_WAVE}, {512*2560}"); I(f"s_lshl_b32 s{S_T2}, s{S_CG}, 4"); I(f"s_add_u32 s{S_T}, s{S_T}, s{S_T2}"); I(f"s_add_u32 s{S_T}, s{S_T}, 1280")
    I("s_waitcnt lgkmcnt(0)"); I("s_barrier")
    for k in range(8):
        for jj in range(2): I(f"ds_read_b64_tr_b16 {v(96+4*k+2*jj,2)}, v{T0} offset:{128*k + 4*CS*jj}")
    for k in range(8):
        I(f"s_waitcnt lgkmcnt({14-2*k})")
        I(f"buffer_store_dwordx4 {v(96+4*k,4)}, v{T1}, {s(SRD_O,4)}, s{S_T} offen")
        I(f"s_add_u32 s{S_T}, s{S_T}, {64*2560}")
    stamp(6)
```

```python
import sys
from asmlib import *
from genB import *
from genA import *
KN = "concat_heads__linear_kernel_hedgehog__ssm_conv_s4d__prompt_kernel"
HEADER = open('concat_heads__linear_kernel_hedgehog__ssm_conv_s4d__prompt.s.ref').read().split("; Override launch")[0]
STAMP_S = 80
def make_stamp(I, on):
    def stamp(n):
        if on:
            I(f"s_memtime {s(96,2)}"); I("s_waitcnt lgkmcnt(0)"); I(f"s_mov_b32 s{STAMP_S+n}, s96")
    return stamp
def stamp_out(I, on):
    if not on: return
    I("s_waitcnt vmcnt(0)")
    I(f"s_memtime {s(96,2)}"); I(f"s_memrealtime {s(98,2)}"); I("s_waitcnt lgkmcnt(0)"); I(f"s_mov_b32 s{STAMP_S+13}, s96"); I(f"s_mov_b32 s{STAMP_S+15}, s98")
    I(f"s_lshl_b32 s96, s2, 2"); I(f"s_add_u32 s96, s96, s{S_WAVE}"); I("s_lshl_b32 s96, s96, 6"); I(f"s_add_u32 s96, s96, {200<<20}"); I("v_mov_b32 v1, s96")
    for q in range(4):
        for r in range(4): I(f"v_mov_b32 v{4+r}, s{STAMP_S+4*q+r}")
        I(f"global_store_dwordx4 v1, v[4:7], {s(P_WS,2)} offset:{16*q}")
def prologue(I, nwg, on):
    if on:
        for r in range(16): I(f"s_mov_b32 s{STAMP_S+r}, 0")
        I(f"s_memtime {s(96,2)}"); I(f"s_memrealtime {s(98,2)}"); I("s_waitcnt lgkmcnt(0)"); I(f"s_mov_b32 s{STAMP_S}, s96"); I(f"s_mov_b32 s{STAMP_S+14}, s98")
    I("s_load_dwordx16 s[4:19], s[0:1], 0"); I("s_load_dwordx8 s[20:27], s[0:1], 64"); I("s_load_dwordx4 s[28:31], s[0:1], 96")
    I(f"s_cmp_ge_u32 s2, {nwg}"); I("s_cbranch_scc1 L_exit")
    I(f"v_lshrrev_b32 v1, 6, v0"); I(f"v_readfirstlane_b32 s{S_WAVE}, v1")
    I(f"s_and_b32 s{S_XCD}, s2, 7"); I(f"s_lshr_b32 s{S_J}, s2, 3")
def build_B(stamps):
    I = Prog()
    prologue(I, 80, stamps)
    gen_B(I, make_stamp(I, stamps))
    stamp_out(I, stamps)
    I("L_exit:"); I("s_endpgm")
    return HEADER + f"""; @launch grid=(80,1,1) block=(256,1,1) lds={B_LDS}
.amdgcn_target "amdgcn-amd-amdhsa--gfx950"
.text
.globl {KN}
.p2align 8
.type {KN},@function
{KN}:
""" + I.finish() + '\n.section .rodata,"a"\n.p2align 6\n' + kd(KN)
def build(stamps, **kw):
    I = Prog()
    st = make_stamp(I, stamps)
    prologue(I, 240, stamps)
    I(f"s_cmp_ge_u32 s{S_J}, 26"); I("s_cbranch_scc1 L_H")
    I(f"s_cmp_ge_u32 s{S_J}, 16"); I("s_cbranch_scc1 L_B")
    gen_A(I, st, **kw)
    gen_G2(I, st)
    I("L_done:")
    stamp_out(I, stamps)
    I("L_exit:"); I("s_endpgm")
    I("L_H:"); I(f"s_sub_u32 s{S_J}, s{S_J}, 26")
    gen_H(I, st)
    I("L_B:"); I(f"s_sub_u32 s{S_J}, s{S_J}, 16")
    gen_B(I, st)
    I("s_branch L_done" if stamps else "s_endpgm")
    return HEADER + f"""; @launch grid=(240,1,1) block=(256,1,1) lds={max(A_LDS, B_LDS)}
.amdgcn_target "amdgcn-amd-amdhsa--gfx950"
.text
.globl {KN}
.p2align 8
.type {KN},@function
{KN}:
""" + I.finish() + '\n.section .rodata,"a"\n.p2align 6\n' + kd(KN)
if __name__ == '__main__':
    open('kB.s','w').write(build_B(True))
    open('kdbg.s','w').write(build(True))
    open('k.s','w').write(build(False))
```

```python
from asmlib import *
from genB import fbits, LOG2E, P_X, P_WQKV, P_WPHI, P_WO, P_OUT, P_DBG, P_WS, S_WAVE, S_XCD, S_J

WS_PART, PX, PFLAG = 0x000000, 0x40000, 245760
WS_RED, RX = 0x200000, 0x4000
WS_O, OX, OFLAG = 0x300000, 0x15000, 81920
WS_SIZE = 0x800000
OOB = 0x40000000
NSYNC = 160
SPIN = 200000
L_ZERO, L_KVF = 0, 2048
BUF = [10240 + 20480*i for i in range(4)] + [96256 + 20480*i for i in range(3)]
L_V, L_PHI = 92160, 116736
A_LDS = 157696
def gbuf(g): return BUF[(g + 4) % 7]
S_TX, S_HX, S_TJ, S_HJ, S_TT, S_HG, S_ROT, S_C, S_T, S_T2, S_WKV, S_SO, S_LW, S_CT, S_SPIN, S_R2 = range(36, 52)
SRD_X, SRD_W, SRD_WS, SRD_WO, SRD_M = 52, 56, 60, 64, 68
S_CC = 72
S_XO = 74; S_T3 = 75
LANE, N_, KQ, R_, CC = 1, 2, 3, 4, 5
T0, T1, T2, T3 = 6, 7, 8, 9
XO = 10; WA = 12; WR = 17; WOA = 20; WOR = 21; DIAG = 29; FLG = 30; CNT = 31
KACC, VACC, RING = 32, 72, 112
AX, APHI = 0, 160

def srd(I, d, p, size):
    I(f"s_mov_b32 s{d}, s{p}"); I(f"s_and_b32 s{d+1}, s{p+1}, 0xffff"); I(f"s_mov_b32 s{d+2}, {size}"); I(f"s_mov_b32 s{d+3}, 0x20000")

def lane_fields(I):
    I(f"v_and_b32 v{LANE}, 63, v0"); I(f"v_and_b32 v{N_}, 15, v0"); I(f"v_bfe_u32 v{KQ}, v0, 4, 2"); I(f"v_bfe_u32 v{R_}, v0, 2, 2"); I(f"v_and_b32 v{CC}, 3, v0")

def spin(I, name, load, cmp, slp=2):
    I(f"s_mov_b32 s{S_SPIN}, {SPIN}")
    I(f"{name}:")
    I(load); I("s_waitcnt vmcnt(0)"); I(cmp)
    I(f"s_cbranch_vccz {name}_ok")
    I(f"s_sleep {slp}")
    I(f"s_sub_u32 s{S_SPIN}, s{S_SPIN}, 1"); I(f"s_cmp_lg_u32 s{S_SPIN}, 0"); I(f"s_cbranch_scc1 {name}")
    I(f"{name}_ok:")

def run_pass(I, lg, uses, ring, nring, L, fill=None, pre=None, premf=None, wgran=2):
    fill = fill or {}; pre = pre or {}; premf = premf or {}
    n = len(uses)
    def rd(u, k):
        if k == 0:
            for f in pre.get(u, []): f()
        lg.issue(uses[u][0](ring + 4*(u % nring))[k], tag=("f", id(uses), u) if k == 1 else None)
    for u in range(min(L, n)): rd(u, 0); rd(u, 1)
    for u in range(n):
        if u % wgran == 0: lg.wait(("f", id(uses), min(u + wgran - 1, n - 1)))
        for f in premf.get(u, []): f()
        ms = uses[u][1](ring + 4*(u % nring))
        for k, m in enumerate(ms):
            I(m)
            if u + L < n and k < 2: rd(u + L, k)
        if u + L < n and len(ms) < 2: rd(u + L, 1)
        for f in fill.get(u, []): f()

def wo_group(I, vm, g, tag):
    o = []
    def head():
        I(f"s_add_u32 s{S_T}, s{S_R2}, {g}"); I(f"s_and_b32 s{S_T}, s{S_T}, 3"); I(f"s_lshl_b32 s{S_T}, s{S_T}, 2"); I(f"s_add_u32 s{S_T}, s{S_T}, s{S_WAVE}")
        I(f"s_mul_i32 s{S_SO}, s{S_T}, {40*1280}")
    for i in range(5):
        def f(i=i):
            if i == 0: head()
            I(f"s_add_u32 m0, s{S_LW}, {gbuf(15+g) + 1024*i}")
            vm.issue(f"buffer_load_dwordx4 v{WOA}, {s(SRD_WO,4)}, s{S_SO} offen lds", tag)
            if i < 4: I(f"s_add_u32 s{S_SO}, s{S_SO}, {8*1280}")
        o.append(f)
    return o

def wo_setup(I):
    I(f"v_lshrrev_b32 v{T0}, 3, v{LANE}"); I(f"v_mul_u32_u24 v{T0}, 1280, v{T0}")
    I(f"v_and_b32 v{T1}, 7, v{LANE}"); I(f"v_lshlrev_b32 v{T2}, 1, v{KQ}"); I(f"v_xor_b32 v{T1}, v{T1}, v{T2}"); I(f"v_lshl_add_u32 v{WOA}, v{T1}, 4, v{T0}")
    I(f"s_lshl_b32 s{S_T}, s{S_CT}, 7"); I(f"v_add_u32 v{WOA}, s{S_T}, v{WOA}")
    I(f"s_mul_i32 s{S_LW}, s{S_WAVE}, 5120")

def softmax(PK, E, OUT, M):
    mm = [f"v_max3_f32 v{M}, v{PK}, v{PK+1}, v{PK+2}", f"v_min3_f32 v{M+1}, v{PK}, v{PK+1}, v{PK+2}"]
    for i in range(3, 19, 2): mm += [f"v_max3_f32 v{M}, v{M}, v{PK+i}, v{PK+i+1}", f"v_min3_f32 v{M+1}, v{M+1}, v{PK+i}, v{PK+i+1}"]
    mm += [f"v_max_f32 v{M}, v{M}, v{PK+19}", f"v_min_f32 v{M+1}, v{M+1}, v{PK+19}"]
    mm += [f"v_mul_f32 v{M}, s{S_CC+1}, v{M}", f"v_mul_f32 v{M+1}, s{S_CC}, v{M+1}"]
    o = []
    for i in range(20):
        h = i & 1
        o.append(f"v_pk_fma_f32 {v(E+2*i,2)}, {v(PK+i-h,2)}, {s(S_CC,2)}, {v(M,2)} op_sel:[{h},0,0] op_sel_hi:[{h},1,1]")
    for i in range(20):
        o += [f"v_exp_f32 v{E+2*i}, v{E+2*i}", f"v_exp_f32 v{E+2*i+1}, v{E+2*i+1}"]
        if i == 2: o.append(f"v_pk_add_f32 {v(M,2)}, {v(E,2)}, {v(E+2,2)}")
        elif i > 2: o.append(f"v_pk_add_f32 {v(M,2)}, {v(M,2)}, {v(E+2*i-2,2)}")
    o.append(f"v_pk_add_f32 {v(M,2)}, {v(M,2)}, {v(E+38,2)}")
    o += [f"v_rcp_f32 v{M}, v{M}", f"v_rcp_f32 v{M+1}, v{M+1}"]
    for i in range(20):
        o.append(f"v_pk_mul_f32 {v(E+2*i,2)}, {v(E+2*i,2)}, {v(M,2)}")
        if i > 0: o.append(f"v_cvt_pk_bf16_f32 v{OUT+i-1}, v{E+2*i-2}, v{E+2*i-1}")
    o.append(f"v_cvt_pk_bf16_f32 v{OUT+19}, v{E+38}, v{E+39}")
    return mm, o

def feature_map(I, ACC, KB, PK, side):
    for T in range(2):
        for i in range(10): I(f"v_cvt_pk_bf16_f32 v{KB+12*T+i}, v{ACC+20*T+2*i}, v{ACC+20*T+2*i+1}")
    mf = []
    for T in range(2):
        for ph in range(3):
            for t in range(5):
                d = v(PK+20*T+4*t, 4)
                mf.append(f"v_mfma_f32_16x16x32_bf16 {d}, {a(APHI+12*t+4*ph,4)}, {v(KB+12*T+4*ph,4)}, {d if ph else 0}")
    return mf

def gen_A(I, stamp, D=2):
    vm = Ctr(I, "vmcnt", 63); lg = Ctr(I, "lgkmcnt", 15)
    I(f"s_lshr_b32 s{S_TX}, s{S_XCD}, 1"); I(f"s_and_b32 s{S_HX}, s{S_XCD}, 1"); I(f"s_and_b32 s{S_TJ}, s{S_J}, 3"); I(f"s_lshr_b32 s{S_HJ}, s{S_J}, 2")
    I(f"s_lshl_b32 s{S_TT}, s{S_TX}, 2"); I(f"s_add_u32 s{S_TT}, s{S_TT}, s{S_TJ}")
    I(f"s_lshl_b32 s{S_HG}, s{S_HX}, 2"); I(f"s_add_u32 s{S_HG}, s{S_HG}, s{S_HJ}")
    I(f"s_add_u32 s{S_CT}, s{S_HG}, s{S_HX}"); I(f"s_mov_b32 s{S_R2}, s{S_HJ}")
    I(f"s_add_u32 s{S_T}, s{S_TJ}, s{S_HJ}"); I(f"s_and_b32 s{S_T}, s{S_T}, 3"); I(f"s_mul_i32 s{S_T}, s{S_T}, 5"); I(f"s_lshr_b32 s{S_T}, s{S_T}, 1")
    I(f"s_xor_b32 s{S_T2}, s{S_HX}, s{S_TX}"); I(f"s_and_b32 s{S_T2}, s{S_T2}, 1"); I(f"s_add_u32 s{S_ROT}, s{S_T}, s{S_T2}"); I(f"s_mov_b32 s{S_C}, s{S_ROT}")
    lane_fields(I)
    I(f"s_lshl_b32 s{S_T}, s{S_TT}, 2"); I(f"s_add_u32 s{S_T}, s{S_T}, s{S_WAVE}"); I(f"s_mul_i32 s{S_T}, s{S_T}, {32*1280}")
    I(f"v_mul_u32_u24 v{XO}, 1280, v{N_}"); I(f"v_lshl_add_u32 v{XO}, v{KQ}, 4, v{XO}"); I(f"v_add_u32 v{XO}, s{S_T}, v{XO}"); I(f"v_add_u32 v{XO+1}, 20480, v{XO}")
    I(f"s_mul_i32 s{S_T}, s{S_HG}, 160")
    for i in range(5):
        I(f"v_add_u32 v{T0}, {64*i}, v{LANE}"); I(f"v_mul_u32_u24 v{T1}, 6554, v{T0}"); I(f"v_lshrrev_b32 v{T1}, 16, v{T1}")
        I(f"v_mul_u32_u24 v{T2}, 10, v{T1}"); I(f"v_sub_u32 v{T0}, v{T0}, v{T2}")
        I(f"v_lshrrev_b32 v{T2}, 1, v{T1}"); I(f"v_xor_b32 v{T2}, v{T2}, v{T1}"); I(f"v_and_b32 v{T2}, 4, v{T2}"); I(f"v_mul_u32_u24 v{T2}, 3, v{T2}"); I(f"v_xor_b32 v{T1}, v{T1}, v{T2}")
        I(f"v_mul_u32_u24 v{T1}, 3840, v{T1}"); I(f"v_lshl_add_u32 v{T0}, v{T0}, 4, v{T1}")
        I(f"s_sub_u32 s{S_T2}, s{S_T}, {1024*i if i < 4 else 0}"); I(f"v_add_u32 v{WA+i}, s{S_T2}, v{T0}")
    I(f"s_lshr_b32 s{S_T}, s{S_WAVE}, 1"); I(f"s_mul_i32 s{S_WKV}, s{S_T}, 122880"); I(f"s_and_b32 s{S_T}, s{S_WAVE}, 1"); I(f"s_add_u32 s{S_T}, s{S_T}, 1"); I(f"s_mul_i32 s{S_T}, s{S_T}, 1280"); I(f"s_add_u32 s{S_WKV}, s{S_WKV}, s{S_T}")
    I(f"s_mul_i32 s{S_LW}, s{S_WAVE}, 5120")
    stamp("p0")
    I("s_waitcnt lgkmcnt(0)")
    srd(I, SRD_X, P_X, 2048*1280); srd(I, SRD_W, P_WQKV, 640*3840)
    def wdma(g, i):
        if i in (0, 4): I(f"s_add_u32 m0, s{S_LW}, {gbuf(g) + 1024*i}")
        vm.issue(f"buffer_load_dwordx4 v{WA+i}, {s(SRD_W,4)}, s{S_SO} offen offset:{1024*i if i < 4 else 0} lds", ("G", g))
    def group(g):
        o = []
        if g < 10:
            def head():
                I(f"s_mul_i32 s{S_SO}, s{S_C}, 245760"); I(f"s_add_u32 s{S_SO}, s{S_SO}, s{S_WKV}"); I(f"s_lshl_b32 s{S_XO}, s{S_C}, 7")
                I(f"s_add_u32 s{S_C}, s{S_C}, 1"); I(f"s_cmp_eq_u32 s{S_C}, 10"); I(f"s_cselect_b32 s{S_C}, 0, s{S_C}")
            def xl(T, ks): vm.issue(f"buffer_load_dwordx4 {a(AX+80*T+8*g+4*ks,4)}, v{XO+T}, {s(SRD_X,4)}, s{S_XO} offen offset:{64*ks}", ("G", g))
            o = [lambda: (head(), wdma(g, 0)), lambda: xl(0, 0), lambda: xl(0, 1), lambda: wdma(g, 1), lambda: wdma(g, 2), lambda: xl(1, 0), lambda: xl(1, 1), lambda: wdma(g, 3), lambda: wdma(g, 4)]
        else:
            def head():
                I(f"s_lshr_b32 s{S_T}, s{S_WAVE}, 1"); I(f"s_add_u32 s{S_T}, s{S_T}, s{S_ROT}"); I(f"s_add_u32 s{S_T}, s{S_T}, {2*(g-10)}")
                I(f"s_sub_u32 s{S_T2}, s{S_T}, 10"); I(f"s_cselect_b32 s{S_T}, s{S_T}, s{S_T2}"); I(f"s_lshl_b32 s{S_T}, s{S_T}, 1")
                I(f"s_and_b32 s{S_T2}, s{S_WAVE}, 1"); I(f"s_add_u32 s{S_T}, s{S_T}, s{S_T2}"); I(f"s_mul_i32 s{S_SO}, s{S_T}, 122880")
            o = [lambda: (head(), wdma(g, 0))] + [(lambda i=i: wdma(g, i)) for i in range(1, 5)]
        return o
    stamp("p1")
    for f in group(0): f()
    stamp("p2")
    srd(I, SRD_M, P_WPHI, 32*800); srd(I, SRD_WS, P_WS, WS_SIZE)
    I(f"v_lshlrev_b32 v{T0}, 4, v0"); I(f"s_mul_i32 s{S_T}, s{S_HG}, 3200"); I(f"s_lshl_b32 s{S_T2}, s{S_WAVE}, 10"); I(f"s_add_u32 m0, s{S_T2}, {L_KVF}")
    vm.issue(f"buffer_load_dwordx4 v{T0}, {s(SRD_M,4)}, s{S_T} offen lds")
    S_PB, S_OB = 76, 77
    I(f"v_mov_b32 v{T2}, 0"); I(f"v_mov_b32 v{T3}, 0")
    I(f"v_lshlrev_b32 v{T0}, 3, v0"); lg.issue(f"ds_write_b64 v{T0}, {v(T2,2)} offset:{L_ZERO}")
    for g in range(1, D):
        for f in group(g): f()
    stamp("p3")
    I(f"v_lshrrev_b32 v{T0}, 1, v{KQ}"); I(f"v_lshlrev_b32 v{T0}, 2, v{T0}"); I(f"v_and_b32 v{T1}, 1, v{KQ}"); I(f"v_add_u32 v{T0}, v{T0}, v{T1}"); I(f"v_lshl_add_u32 v{T0}, v{T0}, 2, v{R_}")
    I(f"v_lshl_add_u32 v{T0}, v{T0}, 2, v{CC}"); I(f"v_mul_u32_u24 v{WR}, 40, v{T0}"); I(f"v_add_u32 v{WR+1}, 0x10000, v{WR}"); I(f"v_add_u32 v{WR+2}, 0x20000, v{WR}")
    I(f"v_mul_u32_u24 v{T0}, 800, v{KQ}"); I(f"v_mul_u32_u24 v{T1}, 40, v{R_}"); I(f"v_add_u32 v{T0}, v{T0}, v{T1}"); I(f"v_add_u32 v{T0}, {L_KVF}, v{T0}")
    I(f"v_cmp_eq_u32 vcc, v{CC}, v{KQ}"); I(f"v_cndmask_b32 v{DIAG}, {L_ZERO}, v{T0}, vcc")
    for t in range(5): I(f"v_accvgpr_write_b32 a{APHI+12*t+10}, 0"); I(f"v_accvgpr_write_b32 a{APHI+12*t+11}, 0")
    I(f"s_mov_b32 s{S_CC}, {fbits(LOG2E)}"); I(f"s_mov_b32 s{S_CC+1}, {fbits(-LOG2E)}")
    srd(I, SRD_WO, P_WO, 640*1280)
    wo_setup(I)
    def wread(base, t):
        def f(reg):
            o = []
            for jj in range(2):
                ad = base + 1280*jj + 8*t
                o.append(f"ds_read_b64_tr_b16 {v(reg+2*jj,2)}, v{WR+(ad>>16)} offset:{ad & 0xffff}")
            return o
        return f
    def wmf(acc, t, ks):
        def f(reg): return [f"v_mfma_f32_16x16x32_bf16 {v(acc+20*T+4*t,4)}, {v(reg,4)}, {a(AX+80*T+4*ks,4)}, {v(acc+20*T+4*t,4) if ks else 0}" for T in range(2)]
        return f
    def gate(g):
        def f():
            if g == 0: stamp("p4")
            vm.wait(("G", g))
            if g == 0: lg.drain()
            I("s_barrier")
            if g == 0: stamp(1)
            stamp(f"g{g}")
        return f
    uses = []; pre = {}; fill = {}
    for c in range(10):
        pre[20*c] = [gate(c)]
        for ks in range(2):
            for m in range(2):
                for t in range(5): uses.append((wread(gbuf(c) + 5120*(2*ks+m), t), wmf(VACC if m else KACC, t, 2*c+ks)))
        gl = group(c + D)
        for k, f in enumerate(gl): fill.setdefault(20*c + (k*16)//len(gl), []).append(f)
    k = 0
    for t in range(5):
        for j in range(5):
            fill.setdefault(22 + k, []).append(lambda t=t, j=j: lg.issue(f"ds_read_b64_tr_b16 {a(APHI+12*t+2*j,2)}, v{DIAG} offset:{160*j+8*t}")); k += 1
    run_pass(I, lg, uses, RING, 8, 4, fill, pre)
    stamp(2)
    KB, PK, E, M, OUT, VB = 112, 136, 176, 216, 220, 240
    rest = []
    for g in range(10 + D, 14): rest += group(g)
    srd(I, SRD_M, P_DBG, 256); I(f"v_and_b32 v{T3}, 31, v0"); I(f"v_lshlrev_b32 v{T3}, 2, v{T3}")
    vm.issue(f"buffer_load_dword v{CNT}, v{T3}, {s(SRD_M,4)}, 0 offen sc1", "cnt")
    for T in range(2): I(f"v_mov_b32 v{KB+12*T+10}, 0"); I(f"v_mov_b32 v{KB+12*T+11}, 0")
    mf = feature_map(I, KACC, KB, PK, None)
    SV, SP = 32, 33
    side = [f"s_lshl_b32 s{S_T3}, s{S_WAVE}, 5", f"v_lshl_add_u32 v{T0}, v{KQ}, 7, v{N_}", f"v_add_u32 v{T0}, s{S_T3}, v{T0}",
            f"v_mul_u32_u24 v{SV}, 48, v{T0}", f"v_add_u32 v{SV}, {L_V}, v{SV}", f"v_mul_u32_u24 v{SP}, 80, v{T0}", f"v_add_u32 v{SP}, {L_PHI}, v{SP}",
            f"v_mov_b32 v{VB+10}, 0x3f803f80", f"v_mov_b32 v{VB+11}, 0x3f803f80"]
    for T in range(2):
        for i in range(10):
            side.append(f"v_cvt_pk_bf16_f32 v{VB+i}, v{VACC+20*T+2*i}, v{VACC+20*T+2*i+1}")
            if i in (3, 7, 9): side.append(f"ds_write_b128 v{SV}, {v(VB+4*(i//4),4)} offset:{768*T+16*(i//4)}")
    mm0, sm0 = softmax(PK, E, OUT, M); mm1, sm1 = softmax(PK+20, E, OUT, M+2)
    def emit(lst):
        for x in lst:
            if callable(x): x()
            elif x.startswith("ds_"): lg.issue(x)
            else: I(x)
    emit(interleave(mf, side, 0, 22)); emit(mm0); emit(mm1)
    I("s_barrier")
    def with_writes(sm, T):
        o = []
        for x in sm:
            o.append(x)
            if x.startswith("v_cvt_pk"):
                i = int(x.split()[1][1:-1]) - OUT
                if i % 4 == 3: o.append(f"ds_write_b128 v{SP}, {v(OUT+i-3,4)} offset:{1280*T+4*(i-3)}")
        return o
    emit(interleave(with_writes(sm0, 0) + with_writes(sm1, 1), rest, 0, 200))
    RV, RP = 34, 35
    I(f"v_lshlrev_b32 v{T0}, 3, v{KQ}"); I(f"v_lshl_add_u32 v{T0}, v{R_}, 1, v{T0}"); I(f"s_lshl_b32 s{S_T}, s{S_WAVE}, 7"); I(f"v_add_u32 v{T0}, s{S_T}, v{T0}")
    I(f"v_mul_u32_u24 v{RV}, 48, v{T0}"); I(f"v_lshl_add_u32 v{RV}, v{CC}, 3, v{RV}"); I(f"v_add_u32 v{RV}, {L_V}, v{RV}")
    I(f"v_mul_u32_u24 v{RP}, 80, v{T0}"); I(f"v_lshl_add_u32 v{RP}, v{CC}, 3, v{RP}"); I(f"v_add_u32 v{RP}, {L_PHI}, v{RP}")
    PO = 36
    I(f"v_mul_u32_u24 v{PO}, 40, v{KQ}"); I(f"v_add_lshl_u32 v{PO}, v{PO}, v{N_}, 4")
    I(f"s_lshl_b32 s{S_T}, s{S_TJ}, 2"); I(f"s_add_u32 s{S_T}, s{S_T}, s{S_HJ}"); I(f"s_lshl_b32 s{S_T}, s{S_T}, 2"); I(f"s_add_u32 s{S_T}, s{S_T}, s{S_WAVE}")
    I(f"s_mul_i32 s{S_T2}, s{S_XCD}, {PX}"); I(f"s_mul_i32 s{S_PB}, s{S_T}, 3840"); I(f"s_add_u32 s{S_PB}, s{S_PB}, s{S_T2}")
    I(f"s_lshl_b32 s{S_T}, s{S_T}, 7"); I(f"s_add_u32 s{S_T}, s{S_T}, s{S_T2}"); I(f"s_add_u32 s{S_T}, s{S_T}, {WS_PART+PFLAG}")
    I(f"v_mov_b32 v{T0}, {OOB}"); I(f"v_mov_b32 v{T1}, s{S_T}"); I(f"v_cmp_eq_u32 vcc, 0, v{LANE}"); I(f"v_cndmask_b32 v{FLG}, v{T0}, v{T1}, vcc")
    lg.drain(); I("s_barrier")
    stamp(3)
    F = 112; KV = 40
    for sg in range(4):
        for j in range(5):
            for jj in range(2):
                ad, st, col = (RV, 48, j) if j < 2 else (RP, 80, j - 2)
                lg.issue(f"ds_read_b64_tr_b16 {v(F+20*sg+4*j+2*jj,2)}, v{ad} offset:{st*(32*sg+jj)+32*col}", ("kv", sg))
        if sg >= 1:
            lg.wait(("kv", sg-1))
            for b in range(2):
                for al in range(3): I(f"v_mfma_f32_16x16x32_bf16 {v(KV+12*b+4*al,4)}, {v(F+20*(sg-1)+4*b,4)}, {v(F+20*(sg-1)+8+4*al,4)}, {v(KV+12*b+4*al,4) if sg > 1 else 0}")
    lg.wait(("kv", 3))
    for b in range(2):
        for al in range(3): I(f"v_mfma_f32_16x16x32_bf16 {v(KV+12*b+4*al,4)}, {v(F+60+4*b,4)}, {v(F+68+4*al,4)}, {v(KV+12*b+4*al,4)}")
    for b in range(2):
        for al in range(3):
            lo = "0x00ff00ff" if al == 2 else "-1"
            if al != 1: I(f"s_mov_b32 exec_lo, {lo}"); I(f"s_mov_b32 exec_hi, {'0' if b else lo}")
            vm.issue(f"buffer_store_dwordx4 {v(KV+12*b+4*al,4)}, v{PO}, {s(SRD_WS,4)}, s{S_PB} offen offset:{2560*b+256*al} sc1", "part")
    I("s_mov_b64 exec, -1")
    vm.wait(("G", 13), "cnt")
    I(f"v_cmp_eq_u32 vcc, 0, v{CNT}"); I("s_cbranch_vccz A_cnt_ok")
    spin(I, "A_cnt", f"buffer_load_dword v{CNT}, v{T3}, {s(SRD_M,4)}, 0 offen sc1", f"v_cmp_eq_u32 vcc, 0, v{CNT}")
    I("s_barrier")
    stamp(4)
    QACC = 72
    uses = []; pre = {}; fill = {}
    for ks in range(20):
        for t in range(5): uses.append((wread(gbuf(10 + ks//4) + 5120*(ks % 4), t), wmf(QACC, t, ks)))
    pre[80] = [gate(14)]
    early = group(14) + wo_group(I, vm, 0, "wo") + wo_group(I, vm, 1, "wo")
    for k, f in enumerate(early): fill.setdefault(1 + 4*k, []).append(f)
    def publish():
        vm.wait("part"); I(f"v_mov_b32 v{T0}, 1")
        vm.issue(f"buffer_store_dword v{T0}, v{FLG}, {s(SRD_WS,4)}, 0 offen sc1")
    fill.setdefault(34, []).append(publish)
    run_pass(I, lg, uses, RING, 8, 4, fill, pre)
    stamp(5)
    late = wo_group(I, vm, 2, "wo") + wo_group(I, vm, 3, "wo")
    PQ = 32
    for T in range(2): I(f"v_mov_b32 v{KB+12*T+10}, 0"); I(f"v_mov_b32 v{KB+12*T+11}, 0")
    mf = feature_map(I, QACC, KB, PK, None)
    mm0, sm0 = softmax(PK, E, PQ, M); mm1, sm1 = softmax(PK+20, E, PQ+20, M+2)
    S_RB = 76
    side = [f"s_lshl_b32 s{S_T3}, s{S_HJ}, 1", f"s_add_u32 s{S_T3}, s{S_T3}, s{S_HX}", f"s_mul_i32 s{S_RB}, s{S_T3}, {RX}", f"s_lshl_b32 s{S_T3}, s{S_WAVE}, 11",
            f"s_add_u32 s{S_RB}, s{S_RB}, s{S_T3}", f"s_add_u32 s{S_RB}, s{S_RB}, {WS_RED}",
            f"v_mul_u32_u24 v{T0}, 1920, v{KQ}", f"v_lshl_add_u32 v{T0}, v{R_}, 3, v{T0}", f"v_add_u32 v{T0}, {L_KVF}, v{T0}",
            f"v_cmp_eq_u32 vcc, v{CC}, v{KQ}", f"v_cndmask_b32 v{DIAG}, {L_ZERO}, v{T0}, vcc"]
    emit(interleave(mf, side + late, 0, 28)); emit(mm0); emit(mm1)
    emit(sm0); emit(sm1)
    stamp(6)
    I(f"v_mov_b32 v{T1}, 1920")
    spin(I, "A_red", f"buffer_load_dword v{T0}, v{T1}, {s(SRD_WS,4)}, s{S_RB} offen sc1", f"v_cmp_ne_u32 vcc, 1, v{T0}")
    vm.drained()
    stamp(7)
    I(f"v_lshlrev_b32 v{T0}, 4, v{LANE}")
    I(f"buffer_load_dwordx4 {v(72,4)}, v{T0}, {s(SRD_WS,4)}, s{S_RB} offen sc1"); I(f"buffer_load_dwordx4 {v(76,4)}, v{T0}, {s(SRD_WS,4)}, s{S_RB} offen offset:896 sc1")
    I(f"s_mul_i32 s{S_T}, s{S_WAVE}, 1920"); I(f"v_add_u32 v{T0}, s{S_T}, v{T0}")
    I("s_waitcnt vmcnt(1)"); I(f"ds_write_b128 v{T0}, {v(72,4)} offset:{L_KVF}"); I("s_waitcnt vmcnt(0)"); I(f"ds_write_b128 v{T0}, {v(76,4)} offset:{L_KVF+896}")
    I("s_waitcnt lgkmcnt(0)"); I("s_barrier"); lg.drained()
    stamp(8)
    NA = 144
    uses = []
    for t in (5, 0, 1, 2, 3, 4):
        for ph in range(5):
            uses.append((lambda reg, t=t, ph=ph: [f"ds_read_b64_tr_b16 {v(reg+2*jj,2)}, v{DIAG} offset:{320*t+64*ph+32*jj}" for jj in range(2)],
                         lambda reg, t=t, ph=ph: [f"v_mfma_f32_16x16x32_bf16 {v(NA+24*T+4*t,4)}, {v(reg,4)}, {v(PQ+20*T+4*ph,4)}, {v(NA+24*T+4*t,4) if ph else 0}" for T in range(2)]))
    OB = 72
    RC = 96
    fill = {}
    fill[8] = [lambda: [I(f"v_add_f32 v{RC+T}, {fbits(1e-6)}, v{NA+24*T+20}") for T in range(2)]]
    fill[9] = [lambda: [I(f"v_rcp_f32 v{RC+T}, v{RC+T}") for T in range(2)]]
    def norm(t, T):
        return [f"v_mul_f32 v{NA+24*T+4*t+e}, v{RC+T}, v{NA+24*T+4*t+e}" for e in range(4)] + [f"v_cvt_pk_bf16_f32 v{OB+12*T+2*t+h}, v{NA+24*T+4*t+2*h}, v{NA+24*T+4*t+2*h+1}" for h in range(2)]
    for t in range(3):
        l = norm(t, 0) + norm(t, 1)
        for k in range(4): fill.setdefault(5*(t+2) + 3 + k, []).append(lambda x=l[3*k:3*k+3]: I.extend(x))
    run_pass(I, lg, uses, RING, 8, 4, fill)
    I(f"s_lshl_b32 s{S_T}, s{S_XCD}, 2"); I(f"s_add_u32 s{S_T}, s{S_T}, s{S_TJ}"); I(f"s_mul_i32 s{S_T}, s{S_T}, {OX}"); I(f"s_add_u32 s{S_T}, s{S_T}, {WS_O}")
    I(f"s_lshl_b32 s{S_T2}, s{S_WAVE}, 2"); I(f"s_add_u32 s{S_T2}, s{S_T2}, s{S_HJ}"); I(f"s_mul_i32 s{S_OB}, s{S_T2}, 5120"); I(f"s_add_u32 s{S_OB}, s{S_OB}, s{S_T}")
    I(f"s_lshl_b32 s{S_T2}, s{S_T2}, 7"); I(f"s_add_u32 s{S_T}, s{S_T}, s{S_T2}"); I(f"s_add_u32 s{S_T}, s{S_T}, {OFLAG}")
    I(f"v_lshlrev_b32 v{T2}, 4, v{LANE}"); I(f"v_lshlrev_b32 v{T3}, 3, v{LANE}")
    for T in range(2): I(f"buffer_store_dwordx4 {v(OB+12*T,4)}, v{T2}, {s(SRD_WS,4)}, s{S_OB} offen offset:{2048*T} sc1")
    for T in range(2):
        I.extend(norm(3, T)); I(f"buffer_store_dwordx4 {v(OB+12*T+4,4)}, v{T2}, {s(SRD_WS,4)}, s{S_OB} offen offset:{2048*T+1024} sc1")
    I(f"s_add_u32 s{S_OB}, s{S_OB}, 4096")
    for T in range(2):
        I.extend(norm(4, T)); I(f"buffer_store_dwordx2 {v(OB+12*T+8,2)}, v{T3}, {s(SRD_WS,4)}, s{S_OB} offen offset:{512*T} sc1")
    I(f"v_mov_b32 v{T0}, {OOB}"); I(f"v_mov_b32 v{T1}, s{S_T}"); I(f"v_cmp_eq_u32 vcc, 0, v{LANE}"); I(f"v_cndmask_b32 v{FLG}, v{T0}, v{T1}, vcc")
    stamp(9)

def gen_G2(I, stamp):
    vm = Ctr(I, "vmcnt", 63); lg = Ctr(I, "lgkmcnt", 15)
    I("G2:")
    I(f"v_mul_u32_u24 v{T0}, 20, v{KQ}"); I(f"v_add_lshl_u32 v{T0}, v{T0}, v{R_}, 7"); I(f"v_lshl_add_u32 v{T0}, v{CC}, 3, v{T0}")
    I(f"v_and_b32 v{T1}, 1, v{KQ}"); I(f"v_lshlrev_b32 v{T1}, 1, v{T1}"); I(f"v_lshrrev_b32 v{T2}, 1, v{R_}"); I(f"v_or_b32 v{T1}, v{T1}, v{T2}")
    for t in range(4):
        I(f"v_xor_b32 v{T2}, {t}, v{T1}"); I(f"v_lshl_add_u32 v{WOR+t}, v{T2}, 5, v{T0}"); I(f"v_add_u32 v{WOR+4+t}, {BUF[5]}, v{WOR+t}")
    S_O0 = 76
    I(f"s_lshl_b32 s{S_T}, s{S_TX}, 3"); I(f"s_add_u32 s{S_T}, s{S_T}, s{S_TJ}"); I(f"s_mul_i32 s{S_O0}, s{S_T}, {OX}"); I(f"s_add_u32 s{S_O0}, s{S_O0}, {WS_O}")
    I(f"v_bfe_u32 v{T0}, v{LANE}, 2, 1"); I(f"v_mul_u32_u24 v{T0}, {4*OX}, v{T0}"); I(f"v_lshl_add_u32 v{T0}, v{CC}, 7, v{T0}")
    I(f"s_lshl_b32 s{S_T}, s{S_WAVE}, 9"); I(f"s_add_u32 s{S_T}, s{S_T}, {OFLAG}"); I(f"v_add_u32 v{T0}, s{S_T}, v{T0}")
    I(f"v_lshlrev_b32 v{XO}, 4, v{LANE}"); I(f"v_lshlrev_b32 v{XO+1}, 3, v{LANE}"); I(f"v_add_u32 v{XO+1}, 4096, v{XO+1}")
    srd(I, SRD_M, P_OUT, 2048*2560)
    OO = WA
    I(f"v_mul_u32_u24 v{OO}, 2560, v{N_}"); I(f"v_and_b32 v{T1}, 1, v{KQ}"); I(f"v_lshl_add_u32 v{OO}, v{T1}, 5, v{OO}"); I(f"v_lshrrev_b32 v{T1}, 1, v{KQ}"); I(f"v_lshl_add_u32 v{OO}, v{T1}, 4, v{OO}")
    I(f"s_lshl_b32 s{S_T}, s{S_TT}, 2"); I(f"s_add_u32 s{S_T}, s{S_T}, s{S_WAVE}"); I(f"s_mul_i32 s{S_T}, s{S_T}, {32*2560}"); I(f"s_lshl_b32 s{S_T2}, s{S_CT}, 7"); I(f"s_add_u32 s{S_T}, s{S_T}, s{S_T2}")
    I(f"v_add_u32 v{OO}, s{S_T}, v{OO}"); I(f"v_add_u32 v{OO+1}, {16*2560}, v{OO}")
    I(f"v_mov_b32 v{T1}, 1")
    I("s_waitcnt vmcnt(0)"); I("s_barrier")
    I(f"buffer_store_dword v{T1}, v{FLG}, {s(SRD_WS,4)}, 0 offen sc1")
    stamp(10)
    spin(I, "G2_o", f"buffer_load_dword v{T1}, v{T0}, {s(SRD_WS,4)}, s{S_O0} offen sc1", f"v_cmp_ne_u32 vcc, 1, v{T1}")
    stamp(11)
    I(f"s_mul_i32 s{S_T}, s{S_WAVE}, {4*5120}"); I(f"s_add_u32 s{S_O0}, s{S_O0}, s{S_T}")
    def oload(p):
        o = []
        def head():
            if p % 2 == 0:
                I(f"s_add_u32 s{S_T}, s{S_R2}, {p//2}"); I(f"s_bfe_u32 s{S_T2}, s{S_T}, 0x10001"); I(f"s_mul_i32 s{S_T2}, s{S_T2}, {4*OX}")
                I(f"s_and_b32 s{S_T}, s{S_T}, 1"); I(f"s_mul_i32 s{S_T}, s{S_T}, 10240"); I(f"s_add_u32 s{S_SO}, s{S_O0}, s{S_T}"); I(f"s_add_u32 s{S_SO}, s{S_SO}, s{S_T2}")
            else: I(f"s_add_u32 s{S_SO}, s{S_SO}, 5120")
        for h in range(3):
            for T in range(2):
                def f(h=h, T=T):
                    if h == 0 and T == 0: head()
                    if h < 2: vm.issue(f"buffer_load_dwordx4 {a(AX+80*T+10*p+4*h,4)}, v{XO}, {s(SRD_WS,4)}, s{S_SO} offen offset:{2048*T+1024*h} sc1", ("o", 10*p+4*h+3, T))
                    else: vm.issue(f"buffer_load_dwordx2 {a(AX+80*T+10*p+8,2)}, v{XO+1}, {s(SRD_WS,4)}, s{S_SO} offen offset:{512*T} sc1", ("o", 10*p+9, T))
                o.append(f)
        return o
    loads = []
    for p in range(8): loads += oload(p)
    PRE = 12
    for f in loads[:PRE]: f()
    ACC = 32
    uses = []; fill = {}; premf = {}
    for ks in range(20):
        for t in range(4):
            def rd(reg, ks=ks, t=t):
                o = []
                for jj in range(2):
                    j = 2*ks + jj; p, jm = divmod(j, 5); g = p // 2
                    b = gbuf(15+g); hi = b >= BUF[5]
                    o.append(f"ds_read_b64_tr_b16 {v(reg+2*jj,2)}, v{WOR+(4 if hi else 0)+(t ^ (2*(jm&1)))} offset:{b - (BUF[5] if hi else 0) + 128*(80*(p%2)+4*jm)}")
                return o
            uses.append((rd, lambda reg, ks=ks, t=t: [f"v_mfma_f32_16x16x32_bf16 {v(ACC+16*T+4*t,4)}, {v(reg,4)}, {a(AX+80*T+4*ks,4)}, {v(ACC+16*T+4*t,4) if ks else 0}" for T in range(2)]))
        last = 4*ks + 3; p, e = divmod(last, 10)
        premf[4*ks] = [lambda tg=10*p + (3 if e < 4 else 7 if e < 8 else 9): vm.wait(("o", tg, 0), ("o", tg, 1))]
    rest = loads[PRE:]
    for k, f in enumerate(rest): fill.setdefault((k*5)//3, []).append(f)
    run_pass(I, lg, uses, RING, 8, 4, fill, None, premf)
    stamp(12)
    for T in range(2):
        for P in range(2):
            q = 64 + 8*T + 4*P; c0 = ACC + 16*T + 8*P
            for i in range(4): I(f"v_cvt_pk_bf16_f32 v{q+i}, v{c0+2*i}, v{c0+2*i+1}")
            I(f"v_permlane16_swap_b32 v{q}, v{q+2}"); I(f"v_permlane16_swap_b32 v{q+1}, v{q+3}")
            I(f"buffer_store_dwordx4 {v(q,4)}, v{OO+T}, {s(SRD_M,4)}, 0 offen offset:{64*P}")

def gen_H(I, stamp):
    vm = Ctr(I, "vmcnt", 63)
    I(f"s_lshr_b32 s{S_TX}, s{S_XCD}, 1"); I(f"s_and_b32 s{S_HX}, s{S_XCD}, 1"); I(f"s_mov_b32 s{S_TJ}, s{S_J}")
    I(f"s_lshl_b32 s{S_TT}, s{S_TX}, 2"); I(f"s_add_u32 s{S_TT}, s{S_TT}, s{S_TJ}")
    I(f"s_mul_i32 s{S_CT}, s{S_HX}, 5"); I(f"s_add_u32 s{S_CT}, s{S_CT}, 4"); I(f"s_mov_b32 s{S_R2}, s{S_TJ}")
    lane_fields(I); wo_setup(I)
    S_RB = 76; S_PB = 77
    I(f"s_mul_i32 s{S_RB}, s{S_XCD}, {RX}"); I(f"s_lshl_b32 s{S_T}, s{S_TJ}, 11"); I(f"s_add_u32 s{S_RB}, s{S_RB}, s{S_T}"); I(f"s_add_u32 s{S_RB}, s{S_RB}, {WS_RED}")
    I(f"s_add_u32 s{S_T}, s{S_RB}, 1920")
    I(f"v_mov_b32 v{T0}, {OOB}"); I(f"v_mov_b32 v{T1}, s{S_T}"); I(f"v_cmp_eq_u32 vcc, 0, v0"); I(f"v_cndmask_b32 v{FLG}, v{T0}, v{T1}, vcc")
    I(f"s_lshl_b32 s{S_T2}, s{S_XCD}, 2"); I(f"s_add_u32 s{S_T2}, s{S_T2}, s{S_TJ}"); I(f"s_lshl_b32 s{S_T3}, s{S_T2}, 2")
    I(f"v_mov_b32 v{T2}, s{S_T3}"); I(f"v_cndmask_b32 v{CNT}, v{T0}, v{T2}, vcc")
    I(f"s_mul_i32 s{S_T2}, s{S_T2}, {OX}"); I(f"s_add_u32 s{S_T2}, s{S_T2}, {WS_O+OFLAG}")
    I(f"s_mul_i32 s{S_T}, s{S_XCD}, {PX}"); I(f"s_lshl_b32 s{S_T3}, s{S_TJ}, 11"); I(f"s_add_u32 s{S_T}, s{S_T}, s{S_T3}"); I(f"s_add_u32 s{S_T}, s{S_T}, {WS_PART+PFLAG}")
    I(f"v_cmp_eq_u32 vcc, 32, v0"); I(f"v_cndmask_b32 v{T0}, v{T0}, v{T1}, vcc")
    I(f"v_lshl_add_u32 v{T1}, v{N_}, 7, s{S_T2}"); I(f"v_cmp_gt_u32 vcc, 32, v0"); I(f"v_cndmask_b32 v{T0}, v{T0}, v{T1}, vcc")
    I(f"v_lshl_add_u32 v{T1}, v{N_}, 7, s{S_T}"); I(f"v_cmp_gt_u32 vcc, 16, v0"); I(f"v_cndmask_b32 v{T0}, v{T0}, v{T1}, vcc")
    I(f"v_mov_b32 v{T2}, 0")
    I("s_waitcnt lgkmcnt(0)")
    srd(I, SRD_WS, P_WS, WS_SIZE); srd(I, SRD_WO, P_WO, 640*1280); srd(I, SRD_M, P_DBG, 256)
    I(f"buffer_store_dword v{T2}, v{T0}, {s(SRD_WS,4)}, 0 offen sc1")
    I(f"v_mov_b32 v{T1}, 1"); I("s_waitcnt vmcnt(0)")
    I(f"buffer_store_dword v{T1}, v{CNT}, {s(SRD_M,4)}, 0 offen sc1")
    for g in range(4):
        for f in wo_group(I, vm, g, "wo"): f()
    I(f"s_lshl_b32 s{S_T}, s{S_TX}, 2"); I(f"s_add_u32 s{S_T}, s{S_T}, s{S_TJ}"); I(f"s_mul_i32 s{S_T2}, s{S_HX}, {PX}")
    I(f"s_mul_i32 s{S_PB}, s{S_T}, 3840"); I(f"s_add_u32 s{S_PB}, s{S_PB}, s{S_T2}")
    I(f"s_lshl_b32 s{S_T}, s{S_T}, 7"); I(f"s_add_u32 s{S_T}, s{S_T}, s{S_T2}"); I(f"s_add_u32 s{S_T3}, s{S_T}, {WS_PART+PFLAG}")
    I(f"v_mul_u32_u24 v{T3}, {2*PX}, v{R_}"); I(f"v_lshl_add_u32 v{T3}, v{CC}, 11, v{T3}")
    I(f"v_and_b32 v{T1}, 31, v0"); I(f"v_lshlrev_b32 v{T1}, 2, v{T1}")
    I("s_waitcnt vmcnt(0)")
    stamp(1)
    spin(I, "H_cnt", f"buffer_load_dword v{CNT}, v{T1}, {s(SRD_M,4)}, 0 offen sc1", f"v_cmp_eq_u32 vcc, 0, v{CNT}", 16)
    stamp(2)
    spin(I, "H_part", f"buffer_load_dword v{T0}, v{T3}, {s(SRD_WS,4)}, s{S_T3} offen sc1", f"v_cmp_ne_u32 vcc, 1, v{T0}")
    stamp(3)
    vm.drained()
    I(f"v_min_u32 v{T0}, 239, v0"); I(f"v_lshlrev_b32 v{T1}, 3, v{T0}"); I(f"v_lshlrev_b32 v{T0}, 4, v{T0}")
    for k in range(16):
        I(f"s_add_u32 s{S_SO}, s{S_PB}, {WS_PART + (k>>2)*2*PX + (k&3)*16*3840}")
        vm.issue(f"buffer_load_dwordx4 {v(32+4*k,4)}, v{T0}, {s(SRD_WS,4)}, s{S_SO} offen sc1", k)
    for k in range(1, 16):
        vm.wait(k)
        I(f"v_pk_add_f32 {v(32,2)}, {v(32,2)}, {v(32+4*k,2)}"); I(f"v_pk_add_f32 {v(34,2)}, {v(34,2)}, {v(34+4*k,2)}")
    I(f"v_cvt_pk_bf16_f32 v32, v32, v33"); I(f"v_cvt_pk_bf16_f32 v33, v34, v35")
    I(f"buffer_store_dwordx2 {v(32,2)}, v{T1}, {s(SRD_WS,4)}, s{S_RB} offen sc1")
    stamp(4)
    I("s_branch G2")
```

```python
import sys
from asmlib import *
from genB import *
from genA import *
KN = "concat_heads__linear_kernel_hedgehog__ssm_conv_s4d__prompt_kernel"
HEADER = open('concat_heads__linear_kernel_hedgehog__ssm_conv_s4d__prompt.s.ref').read().split("; Override launch")[0]
STAMP_S = 80
def make_stamp(I, on):
    def stamp(n):
        if on is True: slot = n if isinstance(n, int) else None
        elif on: slot = on.index(n) + 1 if n in on else None
        else: slot = None
        if slot is not None:
            I(f"s_memtime {s(96,2)}"); I("s_waitcnt lgkmcnt(0)"); I(f"s_mov_b32 s{STAMP_S+slot}, s96")
    return stamp
def stamp_out(I, on):
    if not on: return
    I("s_waitcnt vmcnt(0)")
    I(f"s_memtime {s(96,2)}"); I(f"s_memrealtime {s(98,2)}"); I("s_waitcnt lgkmcnt(0)"); I(f"s_mov_b32 s{STAMP_S+13}, s96"); I(f"s_mov_b32 s{STAMP_S+15}, s98")
    I(f"s_lshl_b32 s96, s2, 2"); I(f"s_add_u32 s96, s96, s{S_WAVE}"); I("s_lshl_b32 s96, s96, 6"); I(f"s_add_u32 s96, s96, {200<<20}"); I("v_mov_b32 v1, s96")
    for q in range(4):
        for r in range(4): I(f"v_mov_b32 v{4+r}, s{STAMP_S+4*q+r}")
        I(f"global_store_dwordx4 v1, v[4:7], {s(P_WS,2)} offset:{16*q}")
def prologue(I, nwg, on):
    if on:
        for r in range(16): I(f"s_mov_b32 s{STAMP_S+r}, 0")
        I(f"s_memtime {s(96,2)}"); I(f"s_memrealtime {s(98,2)}"); I("s_waitcnt lgkmcnt(0)"); I(f"s_mov_b32 s{STAMP_S}, s96"); I(f"s_mov_b32 s{STAMP_S+14}, s98")
    I("s_load_dwordx16 s[4:19], s[0:1], 0"); I("s_load_dwordx8 s[20:27], s[0:1], 64"); I("s_load_dwordx4 s[28:31], s[0:1], 96")
    I(f"s_cmp_ge_u32 s2, {nwg}"); I("s_cbranch_scc1 L_exit")
    I(f"v_lshrrev_b32 v1, 6, v0"); I(f"v_readfirstlane_b32 s{S_WAVE}, v1")
    I(f"s_and_b32 s{S_XCD}, s2, 7"); I(f"s_lshr_b32 s{S_J}, s2, 3")
def build_B(stamps):
    I = Prog()
    prologue(I, 80, stamps)
    gen_B(I, make_stamp(I, stamps))
    stamp_out(I, stamps)
    I("L_exit:"); I("s_endpgm")
    return HEADER + f"""; @launch grid=(80,1,1) block=(256,1,1) lds={B_LDS}
.amdgcn_target "amdgcn-amd-amdhsa--gfx950"
.text
.globl {KN}
.p2align 8
.type {KN},@function
{KN}:
""" + I.finish() + '\n.section .rodata,"a"\n.p2align 6\n' + kd(KN)
def build(stamps, **kw):
    I = Prog()
    st = make_stamp(I, stamps)
    prologue(I, 240, stamps)
    I(f"s_cmp_ge_u32 s{S_J}, 26"); I("s_cbranch_scc1 L_H")
    I(f"s_cmp_ge_u32 s{S_J}, 16"); I("s_cbranch_scc1 L_B")
    gen_A(I, st, **kw)
    gen_G2(I, st)
    I("L_done:")
    stamp_out(I, stamps)
    I("L_exit:"); I("s_endpgm")
    I("L_H:"); I(f"s_sub_u32 s{S_J}, s{S_J}, 26")
    gen_H(I, st)
    I("L_B:"); I(f"s_sub_u32 s{S_J}, s{S_J}, 16")
    gen_B(I, st)
    I("s_branch L_done" if stamps else "s_endpgm")
    return HEADER + f"""; @launch grid=(240,1,1) block=(256,1,1) lds={max(A_LDS, B_LDS)}
.amdgcn_target "amdgcn-amd-amdhsa--gfx950"
.text
.globl {KN}
.p2align 8
.type {KN},@function
{KN}:
""" + I.finish() + '\n.section .rodata,"a"\n.p2align 6\n' + kd(KN)
if __name__ == '__main__':
    open('kB.s','w').write(build_B(True))
    open('kdbg.s','w').write(build(True))
    open('k.s','w').write(build(False))
    open('kdbg2.s','w').write(build(['p0','p1','p2','p3','p4','g0','g1','g2','g3','g5','g7','g9']))
```
